```python
import torch

def _softmax(x, axis=-1):
    return torch.softmax(x, dim=axis)

def _gelu(x):
    return torch.nn.functional.gelu(x, approximate='tanh')

def _silu(x):
    return torch.nn.functional.silu(x)

def _sigmoid(x):
    return torch.sigmoid(x)

def _layernorm(x, axis=-1, eps=1e-05):
    m = x.mean(dim=axis, keepdim=True)
    v = x.var(dim=axis, keepdim=True, unbiased=False)
    return (x - m) / torch.sqrt(v + eps)

def _scatter_add(tgt, idx, src, axis=0):
    return tgt.clone().index_add_(axis, idx, src)

def _segment_sum(src, seg, n):
    out = torch.zeros((n,) + src.shape[1:], dtype=src.dtype)
    return out.index_add_(0, seg, src)

def _pad(x, pw):
    flat = tuple((v for pair in reversed(pw) for v in pair))
    return torch.nn.functional.pad(x, flat)
kernel_name = 'sequential_preLN__memory_aug_recurrent_mem_tr__glu_gated_swiglu__prompt'

def setup_inputs():

    _w = lambda a: (lambda t: t.to(torch.bfloat16) if t.is_floating_point() else t)(torch.as_tensor(a))

    def _A_setup():
        B, S, Dm = (1, 2048, 576)
        H, Dh = (32, 128)
        M, seg = (8, 32)
        seg = min(seg, S)
        S = S // seg * seg
        return {'x': _w((lambda *s: torch.randn(*s, dtype=torch.bfloat16) * 0.05)(B, S, Dm)), 'mem0': _w((lambda *s: torch.randn(*s, dtype=torch.bfloat16) * 0.2)(B, M, Dm)), 'Wq': _w((lambda *s: torch.randn(*s, dtype=torch.bfloat16) * 1.6)(Dm, H, Dh) * Dm ** (-0.5)), 'Wk': _w((lambda *s: torch.randn(*s, dtype=torch.bfloat16) * 1.6)(Dm, H, Dh) * Dm ** (-0.5)), 'Wv': _w((lambda *s: torch.randn(*s, dtype=torch.bfloat16) * 0.2)(Dm, H, Dh) * Dm ** (-0.5)), 'Wo': _w((lambda *s: torch.randn(*s, dtype=torch.bfloat16) * 0.2)(H, Dh, Dm) * (H * Dh) ** (-0.5)), 'seg_len': seg}
    _A_in = _A_setup()

    def _B_setup():
        B, S, D, F = (1, 2048, 576, 4608)
        return {'x': _w((lambda *s: torch.randn(*s, dtype=torch.bfloat16) * 0.05)(B, S, D)), 'w1': _w((lambda *s: torch.randn(*s, dtype=torch.bfloat16) * 0.2)(D, F) * (2.0 / D) ** 0.5), 'w3': _w((lambda *s: torch.randn(*s, dtype=torch.bfloat16) * 0.2)(D, F) * (2.0 / D) ** 0.5), 'w2': _w((lambda *s: torch.randn(*s, dtype=torch.bfloat16) * 0.2)(F, D) * (2.0 / F) ** 0.5)}
    _B_in = _B_setup()
    return {'A_x': _A_in['x'], 'A_mem0': _A_in['mem0'], 'A_Wq': _A_in['Wq'], 'A_Wk': _A_in['Wk'], 'A_Wv': _A_in['Wv'], 'A_Wo': _A_in['Wo'], 'A_seg_len': _A_in['seg_len'], 'B_x': _B_in['x'], 'B_w1': _B_in['w1'], 'B_w3': _B_in['w3'], 'B_w2': _B_in['w2']}

def reference(A_x, A_mem0, A_Wq, A_Wk, A_Wv, A_Wo, A_seg_len, B_x, B_w1, B_w3, B_w2):

    def _A_ref(x, mem0, Wq, Wk, Wv, Wo, seg_len):
        B, S, Dm = x.shape
        H, Dh = (Wq.shape[1], Wq.shape[2])
        M = mem0.shape[1]
        scale = Dh ** (-0.5)
        n_seg = S // seg_len
        L = M + seg_len
        idx = torch.arange(L)
        mask = (idx[:, None] < M) | (idx[:, None] >= idx[None, :])
        mem = mem0
        outs = []
        for s in range(n_seg):
            xs = x[:, s * seg_len:(s + 1) * seg_len, :].clone()
            h = torch.concatenate([mem, xs], axis=1)
            q = torch.einsum('btd,dhe->bhte', h, Wq)
            k = torch.einsum('btd,dhe->bhte', h, Wk)
            v = torch.einsum('btd,dhe->bhte', h, Wv)
            scores = torch.einsum('bhqe,bhke->bhqk', q, k) * scale
            scores = torch.where(mask[None, None], scores, -1000000000.0)
            p = _softmax(scores, axis=-1)
            o = torch.einsum('bhqk,bhke->bhqe', p, v)
            o = torch.einsum('bhte,hed->btd', o, Wo)
            mem = o[:, :M, :].clone()
            outs.append(o[:, M:, :])
        return torch.concatenate(outs, axis=1)

    def _B_ref(x, w1, w3, w2):
        gate = torch.einsum('bsd,df->bsf', x, w1)
        up = torch.einsum('bsd,df->bsf', x, w3)
        h = _silu(gate) * up
        out = torch.einsum('bsf,fd->bsd', h, w2)
        return out
    x = A_x
    h = x + _A_ref(_layernorm(x, axis=-1), A_mem0, A_Wq, A_Wk, A_Wv, A_Wo, A_seg_len)
    h2 = h + _B_ref(_layernorm(h, axis=-1), B_w1, B_w3, B_w2)
    return h2
```

```python
class Asm:
    def __init__(self):
        self.L = []
        self.nlab = 0
    def __call__(self, s):
        for line in s.split("\n"):
            line = line.strip()
            if line:
                self.L.append(line if line.endswith(":") else " " + line)
    def lab(self, base="L"):
        self.nlab += 1
        return f"{base}{self.nlab}"
    def label(self, name):
        self.L.append(name + ":")
    def text(self):
        return "\n".join(self.L) + "\n"

def v(a, n=1):
    return f"v{a}" if n == 1 else f"v[{a}:{a+n-1}]"
def acc(a, n=1):
    return f"a{a}" if n == 1 else f"a[{a}:{a+n-1}]"
def s(a, n=1):
    return f"s{a}" if n == 1 else f"s[{a}:{a+n-1}]"
def r(idx, n=1):
    if idx < 256:
        assert idx + n <= 256
        return v(idx, n)
    return acc(idx - 256, n)
```

```python
from common import *
from loader import Job, schedule
import struct

def fbits(x): return struct.unpack("<I", struct.pack("<f", x))[0]

LDS_MISC = 131072
O_MEM, O_KV, O_QK, O_O = 0, 9216, 25600, 29696
HS = 10240

V_IDX, V_L16, V_LW, V_QW, V_QR, V_OW, V_PS, V_RL, V_MP, V_KV, V_VT, V_AD, V_WM, V_LN, V_VW, V_TMP = range(48, 64)

def build_fragmap():
    m = {}
    nxt = 64
    def alloc(key):
        nonlocal nxt
        m[key] = nxt
        nxt += 8
    for p in range(4):
        for ks in range(4): alloc(('o', p, ks))
    for kb in range(2): alloc(('ol', kb))
    for ks in (16, 17): alloc(('v', ks))
    for ks in range(18):
        for t in range(2): alloc(('qk', t, ks))
    assert nxt == 512, nxt
    return m
FR = build_fragmap()

S_STEP=47; SRD_WQ=12; SRD_WK=48; SRD_WV=52; SRD_WO=56
S_T0=60; S_T1=61; S_T2=62; S_T3=63
S_U=64
S_RED=72
S_SLOT=74; S_TAG=75; S_KVOFF=77; S_READY=78; S_KVMOFF=79
S_C=80; S_NC=81; S_M_PUB=82; S_M_I8=84; S_M_54=86; S_M_32=88; S_8192=91
S_B0=92; S_B1=93; S_P0=94
S_PT=96; S_LAST=98

PROF = [False]
LDF = [' sc1']
STF = ['']
OPT = dict(ackwait=1, ackwait2=1, regpoll=1)

def mk_srd(A, d, ptr, size):
    A(f"s_mov_b32 s{d}, s{ptr}\ns_mov_b32 s{d+1}, s{ptr+1}\ns_mov_b32 s{d+2}, {size}\ns_mov_b32 s{d+3}, 0x20000")

def stamp(A, idx):
    if not PROF[0] or OPT.get('nostamp'): return
    if OPT.get('abs'):
        A(f"""s_memtime s[{S_PT}:{S_PT+1}]
        s_waitcnt lgkmcnt(0)
        s_mov_b32 s{48+idx}, s{S_PT}""")
        return
    A(f"""s_memtime s[{S_PT}:{S_PT+1}]
    s_waitcnt lgkmcnt(0)
    s_sub_u32 s{S_LAST+1}, s{S_PT}, s{S_LAST}
    s_add_u32 s{48+idx}, s{48+idx}, s{S_LAST+1}
    s_mov_b32 s{S_LAST}, s{S_PT}""")

def cap(A, sreg):
    if OPT.get('abs'): return
    if PROF[0]: A(f"s_add_u32 s{sreg}, s{sreg}, 1\ns_cmp_gt_u32 s{sreg}, 0x40000\ns_cbranch_scc1 L_EXIT")

WS = f"s[{SRD_WS}:{SRD_WS+3}]"

def chain_role(A, safe=False, prof=False, nsteps=63):
    ST = " sc1" if safe else STF[0]
    PROF[0] = prof
    L = A.lab
    W, R = S_WAVE, S_RANK
    A(f"""
    v_and_b32 v1, 63, v0
    v_mov_b32 v{V_LN}, v1
    v_and_b32 v2, 8, v1
    v_cmp_eq_u32 vcc, 0, v2
    v_mov_b32 v3, 0xeeee
    v_mov_b32 v4, 0x4444
    v_lshlrev_b32 v5, 4, v1
    v_cndmask_b32 v{V_IDX}, v3, v4, vcc
    v_add_u32 v{V_L16}, {LDS_MISC}, v5
    s_lshl_b32 s{S_B0}, s{W}, 15
    v_add_u32 v{V_LW}, s{S_B0}, v5
    s_lshl_b32 s{S_T0}, s{W}, 11
    v_add_u32 v{V_VT}, s{S_T0}, v{V_L16}
    v_mov_b32 v{V_KV}, v5
    v_and_b32 v7, 15, v1
    v_bfe_u32 v8, v1, 4, 1
    v_lshrrev_b32 v9, 5, v1
    """)
    A(f"""
    v_lshlrev_b32 v6, 11, v9
    v_lshlrev_b32 v10, 4, v7
    v_add_u32 v6, v6, v10
    v_lshlrev_b32 v10, 3, v8
    v_add_u32 v6, v6, v10
    s_lshl_b32 s{S_T0}, s{W}, 9
    s_add_u32 s{S_T0}, s{S_T0}, {LDS_MISC+O_QK}
    v_add_u32 v{V_QW}, s{S_T0}, v6
    """)
    A(f"""
    v_lshlrev_b32 v6, 8, v8
    v_lshlrev_b32 v10, 6, v9
    v_add_u32 v6, v6, v10
    v_bfe_u32 v10, v1, 2, 2
    v_lshlrev_b32 v10, 4, v10
    v_add_u32 v6, v6, v10
    v_and_b32 v10, 1, v1
    v_lshlrev_b32 v10, 3, v10
    v_add_u32 v6, v6, v10
    v_add_u32 v{V_QR}, {LDS_MISC+O_QK}, v6
    """)
    A(f"""
    v_lshlrev_b32 v6, 7, v9
    v_lshlrev_b32 v10, 4, v7
    v_add_u32 v6, v6, v10
    v_lshlrev_b32 v10, 3, v8
    v_add_u32 v6, v6, v10
    s_lshr_b32 s{S_T0}, s{W}, 1
    s_lshl_b32 s{S_T0}, s{S_T0}, 10
    s_and_b32 s{S_T1}, s{W}, 1
    s_lshl_b32 s{S_T1}, s{S_T1}, 9
    s_add_u32 s{S_T0}, s{S_T0}, s{S_T1}
    s_add_u32 s{S_T0}, s{S_T0}, {LDS_MISC+O_O}
    v_add_u32 v{V_OW}, s{S_T0}, v6
    """)
    A(f"""
    v_lshlrev_b32 v6, 8, v9
    v_lshlrev_b32 v10, 7, v8
    v_add_u32 v6, v6, v10
    v_and_b32 v10, 7, v1
    v_lshlrev_b32 v10, 4, v10
    v_add_u32 v6, v6, v10
    v_add_u32 v{V_AD}, {LDS_MISC}, v6
    s_lshl_b32 s{S_T0}, s{R}, 13
    s_lshl_b32 s{S_T1}, s{W}, 10
    s_add_u32 s{S_T0}, s{S_T0}, s{S_T1}
    s_add_u32 s{S_T0}, s{S_T0}, {WS_KVM}
    v_add_u32 v{V_VW}, s{S_T0}, v5
    """)
    A(f"""
    s_mul_i32 s{S_T0}, s{R}, {HS}
    s_lshl_b32 s{S_T1}, s{W}, 11
    s_add_u32 s{S_T0}, s{S_T0}, s{S_T1}
    s_add_u32 s{S_T0}, s{S_T0}, {WS_PART}
    v_add_u32 v{V_PS}, s{S_T0}, v5
    v_cmp_gt_u32 vcc, 32, v1
    v_mov_b32 v6, 1.0
    v_mov_b32 v10, 0
    v_cndmask_b32 v{V_WM}, v10, v6, vcc
    """)
    lnr = L()
    A(f"""
    s_mov_b32 s{S_RED}, 0
    s_mov_b32 s{S_T0}, s{R}
    s_cmp_eq_u32 s{W}, 0
    s_cselect_b32 s{S_RED}, 1, 0
    s_cmp_eq_u32 s{W}, 1
    s_cbranch_scc0 {lnr}
    s_cmp_lt_u32 s{R}, 8
    s_cbranch_scc0 {lnr}
    s_mov_b32 s{S_RED}, 2
    s_add_u32 s{S_T0}, s{R}, 32
    {lnr}:
    """)
    A(f"""
    v_lshrrev_b32 v6, 4, v1
    v_mul_u32_u24 v6, {HS}, v6
    v_lshlrev_b32 v10, 4, v7
    v_add_u32 v6, v6, v10
    s_lshl_b32 s{S_T1}, s{S_T0}, 8
    s_add_u32 s{S_T1}, s{S_T1}, {WS_PART}
    v_add_u32 v{V_RL}, s{S_T1}, v6
    """)
    for i in range(8): A(f"s_mov_b32 s{S_U+i}, {i*4*HS}")
    lreg = L(); lj = L()
    A(f"""
    s_cmp_eq_u32 s{S_RED}, 2
    s_cbranch_scc0 {lreg}
    s_sub_u32 s{S_T1}, s{S_T0}, 32
    s_lshr_b32 s{S_T1}, s{S_T1}, 1
    s_mul_i32 s{S_T1}, s{S_T1}, 9
    s_add_u32 s{S_T1}, s{S_T1}, 8
    v_mov_b32 v10, s{S_T1}
    s_mov_b32 s{S_M_PUB}, 0x000f000f
    s_branch {lj}
    {lreg}:
    s_lshr_b32 s{S_T1}, s{S_T0}, 3
    s_mul_i32 s{S_T1}, s{S_T1}, 9
    s_bfe_u32 s{S_T2}, s{S_T0}, 0x10002
    s_lshl_b32 s{S_T2}, s{S_T2}, 2
    s_add_u32 s{S_T1}, s{S_T1}, s{S_T2}
    s_bfe_u32 s{S_T2}, s{S_T0}, 0x10001
    s_add_u32 s{S_T1}, s{S_T1}, s{S_T2}
    v_bfe_u32 v10, v1, 2, 1
    v_lshlrev_b32 v10, 1, v10
    v_add_u32 v10, s{S_T1}, v10
    s_mov_b32 s{S_M_PUB}, 0x00ff00ff
    {lj}:
    s_mov_b32 s{S_M_PUB+1}, s{S_M_PUB}
    s_and_b32 s{S_T2}, s{S_T0}, 1
    s_lshl_b32 s{S_T2}, s{S_T2}, 2
    v_and_b32 v11, 3, v1
    v_add_u32 v11, s{S_T2}, v11
    v_lshrrev_b32 v12, 2, v10
    v_lshlrev_b32 v12, 10, v12
    v_and_b32 v13, 3, v10
    v_lshlrev_b32 v13, 8, v13
    v_add_u32 v12, v12, v13
    v_lshlrev_b32 v13, 7, v9
    v_add_u32 v12, v12, v13
    v_lshlrev_b32 v13, 4, v11
    v_add_u32 v12, v12, v13
    v_lshlrev_b32 v13, 3, v8
    v_add_u32 v12, v12, v13
    v_add_u32 v{V_MP}, {WS_MEM}, v12
    """)
    c = (128 ** -0.5) * 1.4426950408889634
    A(f"""
    s_mov_b32 s{S_C}, {fbits(c):#x}
    s_mov_b32 s{S_NC}, {fbits(-c):#x}
    s_mov_b32 s{S_M_I8}, 0x00ff00ff
    s_mov_b32 s{S_M_I8+1}, 0x00ff00ff
    s_mov_b32 s{S_M_54}, -1
    s_mov_b32 s{S_M_54+1}, 0x003fffff
    s_mov_b32 s{S_M_32}, -1
    s_mov_b32 s{S_M_32+1}, 0
    s_mov_b32 s{S_8192}, 8192
    """)
    A(f"""
    v_lshlrev_b32 v6, 4, v0
    s_mul_i32 s{S_T2}, s{R}, {HS}
    s_add_u32 s{S_T3}, s{S_T2}, {WS_PART}
    v_add_u32 v7, s{S_T3}, v6
    s_mul_i32 s{S_T2}, s{R}, 18432
    s_add_u32 s{S_T3}, s{S_T2}, {WS_MEM}
    v_add_u32 v9, s{S_T3}, v6
    v_mov_b32 v12, 0
    v_mov_b32 v13, 0
    v_mov_b32 v14, 0
    v_mov_b32 v15, 0
    v_mov_b32 v16, -1
    v_mov_b32 v17, -1
    v_mov_b32 v18, -1
    v_mov_b32 v19, -1
    """)
    for i in range(4):
        A(f"s_mov_b32 s{S_T3}, {i*4096}")
        if i < 2: A(f"buffer_store_dwordx4 v[12:15], v7, {WS}, s{S_T3} offen{ST}")
        A(f"buffer_store_dwordx4 v[16:19], v9, {WS}, s{S_T3} offen{ST}")
    lskip = L()
    A(f"""
    s_cmp_ge_u32 s{W}, 2
    s_cbranch_scc1 {lskip}
    s_mov_b32 s{S_T3}, 8192
    buffer_store_dwordx4 v[12:15], v7, {WS}, s{S_T3} offen{ST}
    s_mov_b32 s{S_T3}, 16384
    buffer_store_dwordx4 v[16:19], v9, {WS}, s{S_T3} offen{ST}
    {lskip}:
    """)
    A(f"s_mov_b32 s{S_T1}, 0")
    publish_flag(A, S_T1)
    A("s_waitcnt vmcnt(0)\ns_barrier")
    arrive(A)
    load_weights(A, prof)
    wait_valid(A)
    mk_srd(A, 12, S_MEM0, 9216)
    lw3 = L(); lj = L()
    A(f"""
    v_and_b32 v2, 7, v{V_LN}
    v_mul_u32_u24 v2, 1152, v2
    v_lshrrev_b32 v3, 4, v{V_LN}
    v_lshlrev_b32 v3, 5, v3
    v_add_u32 v2, v2, v3
    v_bfe_u32 v3, v{V_LN}, 3, 1
    v_lshlrev_b32 v3, 4, v3
    v_add_u32 v2, v2, v3
    s_mul_i32 s{S_T0}, s{W}, 384
    s_mov_b32 s{S_STEP}, 0
    s_mov_b32 s{S_READY}, 0
    s_cmp_eq_u32 s{W}, 3
    s_cbranch_scc1 {lw3}
    buffer_load_dwordx4 v[4:7], v2, s[12:15], s{S_T0} offen
    buffer_load_dwordx4 v[8:11], v2, s[12:15], s{S_T0} offen offset:128
    buffer_load_dwordx4 v[12:15], v2, s[12:15], s{S_T0} offen offset:256
    s_mul_i32 s{S_T0}, s{W}, 3072
    v_add_u32 v16, s{S_T0}, v{V_L16}
    s_waitcnt vmcnt(0)
    """)
    for i in range(4, 16): A(f"v_min_u32 v{i}, -2, v{i}")
    A(f"""
    ds_write_b128 v16, v[4:7] offset:{O_MEM}
    ds_write_b128 v16, v[8:11] offset:{O_MEM+1024}
    ds_write_b128 v16, v[12:15] offset:{O_MEM+2048}
    s_branch {lj}
    {lw3}:
    s_mov_b32 s{S_T3}, 0
    s_mov_b32 s{S_SLOT}, 0
    """)
    io_fetch_kv(A, S_T3)
    A(f"{lj}:")
    zero_acc1(A)
    A("s_waitcnt vmcnt(0) lgkmcnt(0)\ns_barrier")
    if prof:
        A(f"s_memtime s[{S_PT}:{S_PT+1}]\ns_waitcnt lgkmcnt(0)\ns_mov_b32 s{S_P0}, s{S_PT}\ns_mov_b32 s{S_LAST}, s{S_PT}")
        for i in range(12): A(f"s_mov_b32 s{48+i}, 0")
    lloop = L("CH_LOOP"); llast = L("CH_LAST"); lretry = L("CH_RETRY"); lp1 = L("CH_P1")
    A(f"{lloop}:")
    A(f"""
    s_lshl_b32 s{S_KVMOFF}, s{S_STEP}, 18
    s_add_u32 s{S_T0}, s{S_STEP}, 1
    s_and_b32 s{S_TAG}, s{S_T0}, 1
    """)
    A(f"{lp1}:")
    pass1(A, lretry)
    stamp(A, 0)
    post1(A)
    stamp(A, 1)
    A(f"s_cmp_eq_u32 s{S_STEP}, {nsteps}\ns_cbranch_scc1 {llast}")
    A(f"s_add_u32 s{S_T0}, s{S_STEP}, 1\ns_mul_i32 s{S_SLOT}, s{S_T0}, 9216")
    sphase(A)
    stamp(A, 2)
    softmax_pv(A)
    stamp(A, 3)
    outproj(A, ST)
    stamp(A, 4)
    window(A, ST)
    stamp(A, 8)
    A(f"s_add_u32 s{S_STEP}, s{S_STEP}, 1\ns_branch {lloop}")
    A(f"{lretry}:")
    cap(A, 59)
    lr3 = L()
    A(f"s_barrier\ns_cmp_eq_u32 s{W}, 3\ns_cbranch_scc1 {lr3}")
    gather_dma(A)
    A(f"s_waitcnt vmcnt(0)\n{lr3}:")
    zero_acc1(A)
    A(f"s_barrier\ns_branch {lp1}")
    A(f"{llast}:")
    A(f"""
    s_lshl_b32 s{S_T0}, s{W}, 9
    v_add_u32 v46, s{S_T0}, v{V_QR}
    ds_read_b64_tr_b16 v[40:41], v46 offset:2048
    ds_read_b64_tr_b16 v[42:43], v46 offset:{2048+128}
    s_waitcnt lgkmcnt(0)
    buffer_store_dwordx4 v[40:43], v{V_VW}, {WS}, s{S_KVMOFF} offen sc1
    s_add_u32 s{S_T0}, s{S_KVMOFF}, 4096
    buffer_store_dwordx2 v[8:9], v{V_VW}, {WS}, s{S_T0} offen sc1
    s_waitcnt vmcnt(0)
    s_barrier
    """)
    lw = L()
    A(f"s_cmp_eq_u32 s{W}, 3\ns_cbranch_scc0 {lw}")
    A(f"s_add_u32 s{S_T1}, s{S_STEP}, 1")
    publish_flag(A, S_T1)
    A(f"{lw}:")
    if prof:
        A(f"s_memtime s[{S_PT}:{S_PT+1}]\ns_waitcnt lgkmcnt(0)\ns_sub_u32 s{S_P0}, s{S_PT}, s{S_P0}")
        prof_store(A, 1, S_P0)
        for i in range(12): prof_store(A, 2+i, 48+i)
    A("s_waitcnt vmcnt(0)\ns_endpgm")

def load_weights(A, prof):
    W, R = S_WAVE, S_RANK
    mk_srd(A, SRD_WQ, S_WQ, 4718592); mk_srd(A, SRD_WK, S_WK, 4718592); mk_srd(A, SRD_WV, S_WV, 4718592); mk_srd(A, SRD_WO, S_WO, 4718592)
    VG_Q, VG_O, VT_QK0, VT_QK1, VT_V0, VT_V1, VT_O, VT_OL = 0, 2, 3, 4, 5, 12, 13, 14
    A(f"""
    v_mov_b32 v1, v{V_LN}
    s_lshl_b32 s{S_B1}, s{W}, 13
    s_add_u32 s{S_B1}, s{S_B1}, {LDS_MISC}
    v_lshrrev_b32 v6, 2, v1
    v_lshlrev_b32 v6, 13, v6
    v_and_b32 v7, 3, v1
    v_lshlrev_b32 v8, 4, v7
    v_add_u32 v6, v6, v8
    s_lshl_b32 s{S_T0}, s{R}, 8
    s_lshl_b32 s{S_T1}, s{W}, 6
    s_add_u32 s{S_T0}, s{S_T0}, s{S_T1}
    v_add_u32 v{VG_Q}, s{S_T0}, v6
    v_mul_u32_u24 v6, 3641, v1
    v_lshrrev_b32 v6, 16, v6
    v_mul_u32_u24 v8, 18, v6
    v_sub_u32 v8, v1, v8
    v_mul_u32_u24 v6, 1152, v6
    v_lshlrev_b32 v8, 4, v8
    v_add_u32 v6, v6, v8
    s_mul_i32 s{S_T0}, s{R}, 147456
    s_mul_i32 s{S_T1}, s{W}, 288
    s_add_u32 s{S_T0}, s{S_T0}, s{S_T1}
    v_add_u32 v{VG_O}, s{S_T0}, v6
    """)
    A(f"""
    v_lshlrev_b32 v7, 3, v7
    v_lshrrev_b32 v6, 5, v1
    v_lshlrev_b32 v6, 3, v6
    v_bfe_u32 v8, v1, 4, 1
    v_lshlrev_b32 v8, 2, v8
    v_add_u32 v6, v6, v8
    v_bfe_u32 v8, v1, 2, 1
    v_add_u32 v6, v6, v8
    v_bfe_u32 v9, v1, 3, 1
    v_lshlrev_b32 v8, 6, v6
    v_add_u32 v8, v8, v7
    v_lshlrev_b32 v10, 12, v9
    v_add_u32 v10, v10, v8
    v_add_u32 v{VT_QK0}, s{S_B0}, v10
    v_add_u32 v{VT_QK1}, s{S_B1}, v10
    v_lshlrev_b32 v10, 5, v9
    v_add_u32 v10, v10, v8
    v_add_u32 v{VT_V0}, s{S_B0}, v10
    v_add_u32 v{VT_V1}, s{S_B1}, v10
    v_mul_u32_u24 v8, 288, v6
    v_add_u32 v8, v8, v7
    v_lshlrev_b32 v10, 5, v9
    v_add_u32 v8, v8, v10
    v_add_u32 v{VT_O}, s{S_B0}, v8
    """)
    A(f"""
    v_lshrrev_b32 v6, 5, v1
    v_lshlrev_b32 v6, 4, v6
    v_bfe_u32 v8, v1, 4, 1
    v_lshlrev_b32 v8, 2, v8
    v_add_u32 v6, v6, v8
    v_bfe_u32 v8, v1, 2, 1
    v_add_u32 v6, v6, v8
    v_lshlrev_b32 v8, 3, v9
    v_add_u32 v6, v6, v8
    v_mul_u32_u24 v8, 288, v6
    v_add_u32 v8, v8, v7
    v_add_u32 v{VT_OL}, s{S_B0}, v8
    """)
    def dma_rows(A, srd, base, off, kb):
        for i in range(4):
            A(f"s_add_u32 m0, s{base}, {off + i*1024}")
            A(f"s_mov_b32 s{S_T0}, {(64*kb + 16*i) * 8192}")
            A(f"buffer_load_dwordx4 v{VG_Q}, s[{srd}:{srd+3}], s{S_T0} offen lds")
    def qk_job(kb):
        def dma(A, area):
            rg, off = area
            base = S_B0 if rg == 0 else S_B1
            dma_rows(A, SRD_WQ, base, off, kb); dma_rows(A, SRD_WK, base, off + 4096, kb)
            return 8
        def consume(A, area):
            rg, off = area
            vt = VT_QK0 if rg == 0 else VT_QK1
            for hf in range(2):
                for t in range(2):
                    for rho in range(4):
                        o = off + (32*hf + 2*(rho & 1) + 16*(rho >> 1)) * 64 + t * 32
                        A(f"ds_read_b64_tr_b16 {r(FR[('qk', t, 2*kb+hf)] + 2*rho, 2)}, v{vt} offset:{o}")
        j = Job(8192, dma, consume); j.nd = 8; j.region = None
        return j
    def v_job(kb):
        lds_dest = kb < 8
        def dma(A, area):
            rg, off = area
            dma_rows(A, SRD_WV, S_B0 if rg == 0 else S_B1, off, kb)
            return 4
        def consume(A, area):
            rg, off = area
            vt = VT_V0 if rg == 0 else VT_V1
            for hf in range(2):
                dst = (16 + 8*hf) if lds_dest else FR[('v', 2*kb+hf)]
                for rho in range(4):
                    o = off + (32*hf + 2*(rho & 1) + 16*(rho >> 1)) * 64
                    A(f"ds_read_b64_tr_b16 {r(dst + 2*rho, 2)}, v{vt} offset:{o}")
            if lds_dest:
                A("s_waitcnt lgkmcnt(0)")
                for hf in range(2):
                    for q in range(2):
                        A(f"ds_write_b128 v{V_LW}, v[{16+8*hf+4*q}:{19+8*hf+4*q}] offset:{off + hf*2048 + q*1024}")
        j = Job(4096, dma, consume, fixed=((0, kb*4096) if lds_dest else None)); j.nd = 4; j.region = None
        return j
    def wo_job(ks):
        def dma(A, area):
            rg, off = area
            A(f"s_mov_b64 exec, s[{S_M_54}:{S_M_54+1}]")
            for i in range(11):
                A(f"s_add_u32 m0, s{S_B0}, {off + i*864}")
                A(f"s_mov_b32 s{S_T0}, {(32*ks + 3*i) * 1152}")
                A(f"buffer_load_dwordx4 v{VG_O}, s[{SRD_WO}:{SRD_WO+3}], s{S_T0} offen lds")
            A("s_mov_b64 exec, -1")
            return 11
        def consume(A, area):
            rg, off = area
            for p in range(4):
                for rho in range(4):
                    o = off + (2*(rho & 1) + 16*(rho >> 1)) * 288 + 2*p * 32
                    A(f"ds_read_b64_tr_b16 {r(FR[('o', p, ks)] + 2*rho, 2)}, v{VT_O} offset:{o}")
            kb, hf = ks >> 1, ks & 1
            for rr in range(2):
                rho = 2*hf + rr
                o = off + (2*rr) * 288 + 8 * 32
                A(f"ds_read_b64_tr_b16 {r(FR[('ol', kb)] + 2*rho, 2)}, v{VT_OL} offset:{o}")
        j = Job(9504, dma, consume); j.nd = 11; j.region = [0]
        return j
    wj = [wo_job(ks) for ks in range(4)]
    qk = [qk_job(kb) for kb in range(9)]
    jobs = [wj[0], wj[1], wj[2], qk[0], wj[3], v_job(8)] + qk[1:] + [v_job(kb) for kb in range(8)]
    if prof:
        A(f"s_memtime s[{S_PT}:{S_PT+1}]\ns_waitcnt lgkmcnt(0)\ns_mov_b32 s{S_P0}, s{S_PT}")
    schedule(A, jobs, [32768, 8192], maxout=60, align=256)
    A("s_barrier")
    if prof:
        A(f"s_memtime s[{S_PT}:{S_PT+1}]\ns_waitcnt lgkmcnt(0)\ns_sub_u32 s{S_P0}, s{S_PT}, s{S_P0}")
        prof_store(A, 0, S_P0)

def prof_store(A, slot, sreg):
    A(f"""
    s_lshl_b32 s{S_T0}, s{S_RANK}, 2
    s_add_u32 s{S_T0}, s{S_T0}, s{S_WAVE}
    s_lshl_b32 s{S_T0}, s{S_T0}, 6
    s_add_u32 s{S_T0}, s{S_T0}, {WS_PROF + slot*4}
    v_mov_b32 v{V_TMP}, s{sreg}
    v_mov_b32 v0, 0
    buffer_store_dword v{V_TMP}, v0, {WS}, s{S_T0} offen
    s_waitcnt vmcnt(0)
    """)

def arrive(A):
    l = A.lab()
    A(f"""
    s_cmp_eq_u32 s{S_WAVE}, 0
    s_cbranch_scc0 {l}
    s_lshl_b32 s60, s{S_XCC}, 2
    v_mov_b32 v6, s60
    v_mov_b32 v7, 1
    s_mov_b64 exec, 1
    buffer_atomic_add v7, v6, s[{SRD_DBG}:{SRD_DBG+3}], 0 offen offset:{DBG_T2} sc0
    s_waitcnt vmcnt(0)
    v_cmp_eq_u32 vcc, 31, v7
    s_and_b64 exec, exec, vcc
    v_mov_b32 v7, 1
    s_cbranch_execz {l}x
    buffer_store_dword v7, v6, s[{SRD_DBG}:{SRD_DBG+3}], 0 offen offset:{DBG_VALID} sc1
    {l}x:
    s_mov_b64 exec, -1
    {l}:
    """)

def wait_valid(A):
    l = A.lab()
    A(f"""
    v_lshlrev_b32 v6, 2, v{V_LN}
    v_and_b32 v6, 28, v6
    {l}:
    buffer_load_dword v7, v6, s[{SRD_DBG}:{SRD_DBG+3}], 0 offen offset:{DBG_VALID} sc1
    s_waitcnt vmcnt(0)
    v_cmp_ne_u32 vcc, 1, v7
    s_cbranch_vccnz {l}
    """)

def zero_acc1(A):
    for i in range(0, 12, 2): A(f"v_pk_mov_b32 v[{i}:{i+1}], 0, 0")
    A("v_mov_b32 v40, 0")

def pass1(A, lretry):
    AF = [12, 16, 20]; LB = [24, 32]
    def rd_a(ks): A(f"ds_read_b128 v[{AF[ks%3]}:{AF[ks%3]+3}], v{V_AD} offset:{O_MEM + ks*512}")
    def rd_lb(ks):
        b = LB[ks & 1]
        A(f"ds_read_b128 v[{b}:{b+3}], v{V_LW} offset:{ks*2048}")
        A(f"ds_read_b128 v[{b+4}:{b+7}], v{V_LW} offset:{ks*2048 + 1024}")
    def sm(acc_, b, ks):
        m = AF[ks % 3]
        A(f"v_smfmac_f32_16x16x64_bf16 v[{acc_}:{acc_+3}], v[{m}:{m+3}], {b}, v{V_IDX}")
    log = []
    def issue(kind, ks):
        if kind == 'a': rd_a(ks); log.append(('a', ks))
        elif kind == 'k':
            A(f"ds_read_b64_tr_b16 v[40:41], v46 offset:2048")
            A(f"ds_read_b64_tr_b16 v[42:43], v46 offset:{2048+128}")
            log.append(('k', 0)); log.append(('k', 0))
        else: rd_lb(ks); log.append(('l', ks)); log.append(('l', ks))
    def wait_for(item):
        last = max(i for i, x in enumerate(log) if x == item)
        A(f"s_waitcnt lgkmcnt({min(15, len(log) - 1 - last)})")
    issue('a', 0); issue('l', 0); issue('a', 1); issue('l', 1)
    A(f"s_lshl_b32 s{S_T0}, s{S_WAVE}, 9\nv_add_u32 v46, s{S_T0}, v{V_QR}")
    issue('k', 0)
    for ks in range(18):
        wait_for(('a', ks))
        sm(0, r(FR[('qk', 0, ks)], 8), ks)
        if ks + 2 < 18: issue('a', ks + 2)
        sm(4, r(FR[('qk', 1, ks)], 8), ks)
        if ks < 16:
            wait_for(('l', ks))
            sm(8, v(LB[ks & 1], 8), ks)
            if ks + 2 < 16: issue('l', ks + 2)
        else:
            sm(8, r(FR[('v', ks)], 8), ks)
        if ks == 1:
            wait_for(('k', 0))
            l = A.lab()
            A(f"""s_cmp_eq_u32 s{S_STEP}, 0
            s_cbranch_scc1 {l}
            s_sub_u32 s{S_T0}, s{S_KVMOFF}, {1<<18}
            buffer_store_dwordx4 v[40:43], v{V_VW}, {WS}, s{S_T0} offen sc1
            s_add_u32 s{S_T0}, s{S_T0}, 4096
            buffer_store_dwordx2 v[44:45], v{V_VW}, {WS}, s{S_T0} offen sc1
            {l}:""")

def post1(A):
    A(f"ds_read_b128 v[32:35], v{V_L16} offset:{O_KV + 0*1024}")
    A(f"ds_read_b128 v[36:39], v{V_L16} offset:{O_KV + 4*1024}")
    A("v_cvt_pk_bf16_f32 v0, v0, v1\nv_cvt_pk_bf16_f32 v1, v2, v3")
    A(f"ds_write_b64 v{V_QW}, v[0:1]")
    A("v_cvt_pk_bf16_f32 v4, v4, v5\nv_cvt_pk_bf16_f32 v5, v6, v7")
    A(f"ds_write_b64 v{V_QW}, v[4:5] offset:256")
    A(f"ds_read_b128 v[16:19], v{V_L16} offset:{O_KV + 1*1024}")
    A(f"ds_read_b128 v[20:23], v{V_L16} offset:{O_KV + 5*1024}")
    A("v_cvt_pk_bf16_f32 v8, v8, v9\nv_cvt_pk_bf16_f32 v9, v10, v11")
    A("s_waitcnt vmcnt(0) lgkmcnt(2)\ns_barrier")

SETS = [dict(q=24, km=28, kx0=32, kx1=36), dict(q=40, km=44, kx0=16, kx1=20)]
TM, T1, T2 = 0, 4, 12
def sphase(A):
    def rd_qk(kk):
        st = SETS[kk & 1]
        A(f"ds_read_b64_tr_b16 v[{st['q']}:{st['q']+1}], v{V_QR} offset:{512*kk}")
        A(f"ds_read_b64_tr_b16 v[{st['q']+2}:{st['q']+3}], v{V_QR} offset:{512*kk+128}")
        A(f"ds_read_b64_tr_b16 v[{st['km']}:{st['km']+1}], v{V_QR} offset:{2048+512*kk}")
        A(f"ds_read_b64_tr_b16 v[{st['km']+2}:{st['km']+3}], v{V_QR} offset:{2048+512*kk+128}")
    def rd_kx(kk):
        st = SETS[kk & 1]
        A(f"ds_read_b128 v[{st['kx0']}:{st['kx0']+3}], v{V_L16} offset:{O_KV + kk*1024}")
        A(f"ds_read_b128 v[{st['kx1']}:{st['kx1']+3}], v{V_L16} offset:{O_KV + (4+kk)*1024}")
    def mm(kk):
        st = SETS[kk & 1]
        q = v(st['q'], 4)
        for a, x in ((T1, 'kx0'), (T2, 'kx1'), (TM, 'km')):
            c = "0" if kk == 0 else v(a, 4)
            A(f"v_mfma_f32_16x16x32_bf16 v[{a}:{a+3}], {v(st[x],4)}, {q}, {c}")
    rd_qk(0); rd_qk(1)
    l3 = A.lab()
    A(f"s_cmp_eq_u32 s{S_WAVE}, 3\ns_cbranch_scc0 {l3}")
    publish_flag(A, S_STEP)
    io_prefetch(A)
    A(f"{l3}:")
    A("s_waitcnt lgkmcnt(4)")
    mm(0)
    rd_kx(2); rd_qk(2)
    A("s_waitcnt lgkmcnt(6)")
    mm(1)
    rd_kx(3); rd_qk(3)
    A("s_waitcnt lgkmcnt(6)")
    mm(2)
    A(f"ds_read_b128 v[24:27], v{V_VT} offset:{O_KV + 8192}")
    A(f"ds_read_b128 v[28:31], v{V_VT} offset:{O_KV + 8192 + 1024}")
    A("s_waitcnt lgkmcnt(2)")
    mm(3)

def xlane(A, op, x, t):
    A(f"""
    v_mov_b32 v{t}, v{x}
    s_nop 1
    v_permlane32_swap_b32 v{x}, v{t}
    {op} v{x}, v{x}, v{t}
    v_mov_b32 v{t}, v{x}
    s_nop 1
    v_permlane16_swap_b32 v{x}, v{t}
    {op} v{x}, v{x}, v{t}
    """)

def softmax_pv(A):
    S = [TM+i for i in range(4)] + [T1+i for i in range(4)] + [T2+i for i in range(4)]
    A("s_nop 5")
    A(f"v_max3_f32 v32, v{T1}, v{T1+1}, v{T1+2}")
    A(f"v_max3_f32 v32, v32, v{T1+3}, v{T2}")
    A(f"v_max3_f32 v33, v{T2+1}, v{T2+2}, v{T2+3}")
    A(f"v_max3_f32 v32, v32, v33, v{TM}")
    A(f"v_max3_f32 v32, v32, v{TM+1}, v{TM+2}")
    A(f"v_max_f32 v32, v32, v{TM+3}")
    xlane(A, "v_max_f32", 32, 33)
    A(f"v_mul_f32 v33, s{S_NC}, v32")
    for i in S: A(f"v_fma_f32 v{i}, v{i}, s{S_C}, v33")
    for i in S: A(f"v_exp_f32 v{i}, v{i}")
    A(f"v_cvt_pk_bf16_f32 v34, v{TM}, v{TM+1}\nv_cvt_pk_bf16_f32 v35, v{TM+2}, v{TM+3}")
    A(f"v_cvt_pk_bf16_f32 v36, v{T1}, v{T1+1}\nv_cvt_pk_bf16_f32 v37, v{T1+2}, v{T1+3}\nv_cvt_pk_bf16_f32 v38, v{T2}, v{T2+1}\nv_cvt_pk_bf16_f32 v39, v{T2+2}, v{T2+3}")
    M = f"s[{S_M_32}:{S_M_32+1}]"
    A(f"v_cndmask_b32 v16, 0, v34, {M}\nv_cndmask_b32 v17, 0, v35, {M}")
    A(f"v_cndmask_b32 v18, v34, 0, {M}\nv_cndmask_b32 v19, v35, 0, {M}")
    A("s_waitcnt lgkmcnt(0)")
    A("v_mfma_f32_16x16x32_bf16 v[40:43], v[24:27], v[36:39], 0")
    A("v_mfma_f32_16x16x32_bf16 v[44:47], v[28:31], v[36:39], 0")
    A("v_mfma_f32_16x16x16_bf16 v[40:43], v[8:9], v[16:17], v[40:43]")
    A("v_mfma_f32_16x16x16_bf16 v[44:47], v[8:9], v[18:19], v[44:47]")
    A(f"v_pk_add_f32 v[{T1}:{T1+1}], v[{T1}:{T1+1}], v[{T1+2}:{T1+3}]")
    A(f"v_pk_add_f32 v[{T2}:{T2+1}], v[{T2}:{T2+1}], v[{T2+2}:{T2+3}]")
    A(f"v_pk_add_f32 v[{TM}:{TM+1}], v[{TM}:{TM+1}], v[{TM+2}:{TM+3}]")
    A(f"v_pk_add_f32 v[{T1}:{T1+1}], v[{T1}:{T1+1}], v[{T2}:{T2+1}]")
    A(f"v_add_f32 v{TM}, v{TM}, v{TM+1}\nv_add_f32 v{T1}, v{T1}, v{T1+1}")
    A(f"v_fma_f32 v20, v{TM}, v{V_WM}, v{T1}")
    xlane(A, "v_add_f32", 20, 21)
    A("v_rcp_f32 v21, v20")
    A("s_nop 0")
    for i in range(8): A(f"v_mul_f32 v{40+i}, v{40+i}, v21")
    A("v_cvt_pk_bf16_f32 v40, v40, v41\nv_cvt_pk_bf16_f32 v41, v42, v43\nv_cvt_pk_bf16_f32 v42, v44, v45\nv_cvt_pk_bf16_f32 v43, v46, v47")
    A(f"s_mov_b64 exec, s[{S_M_I8}:{S_M_I8+1}]")
    A(f"ds_write_b64 v{V_OW}, v[40:41]")
    A(f"ds_write_b64 v{V_OW}, v[42:43] offset:256")
    A("s_mov_b64 exec, -1")
    A("v_mov_b32 v44, v8\nv_mov_b32 v45, v9")
    for i in range(0, 20, 2): A(f"v_pk_mov_b32 v[{i}:{i+1}], 0, 0")
    A("s_waitcnt lgkmcnt(0)\ns_barrier")

def outproj(A, ST):
    for ks in range(4): A(f"ds_read_b128 v[{20+4*ks}:{23+4*ks}], v{V_AD} offset:{O_O + ks*512}")
    for kb in range(2): A(f"ds_read_b128 v[{36+4*kb}:{39+4*kb}], v{V_L16} offset:{O_O + kb*1024}")
    def sm(p, ks): A(f"v_smfmac_f32_16x16x64_bf16 v[{4*p}:{4*p+3}], v[{20+4*ks}:{23+4*ks}], {r(FR[('o', p, ks)], 8)}, v{V_IDX}")
    def sml(kb): A(f"v_smfmac_f32_16x16x64_bf16 v[16:19], v[{36+4*kb}:{39+4*kb}], {r(FR[('ol', kb)], 8)}, v{V_IDX}")
    def post(sp):
        a, b = 8*sp, 8*sp + 4
        A(f"v_cvt_pk_bf16_f32 v{a}, v{a}, v{a+1}\nv_cvt_pk_bf16_f32 v{a+1}, v{a+2}, v{a+3}")
        A(f"v_cvt_pk_bf16_f32 v{a+2}, v{b}, v{b+1}\nv_cvt_pk_bf16_f32 v{a+3}, v{b+2}, v{b+3}")
        A(f"v_and_or_b32 v{a}, v{a}, -2, s{S_TAG}")
        A(f"buffer_store_dwordx4 v[{a}:{a+3}], v{V_PS}, {WS}, 0 offen offset:{1024*sp}{ST}")
    for ks in range(4):
        A(f"s_waitcnt lgkmcnt({5-ks})")
        sm(0, ks); sm(1, ks)
    for ks in range(4):
        sm(2, ks); sm(3, ks)
        if ks == 1: post(0)
    A("s_waitcnt lgkmcnt(0)")
    sml(0); sml(1)
    A(f"""
    v_and_b32 v46, 31, v{V_LN}
    v_lshlrev_b32 v46, 4, v46
    v_lshrrev_b32 v47, 5, v{V_LN}
    v_lshlrev_b32 v47, 3, v47
    v_add_u32 v46, v46, v47
    """)
    post(1)
    A(f"""
    s_mul_i32 s{S_T0}, s{S_RANK}, {HS}
    s_lshl_b32 s{S_T1}, s{S_WAVE}, 9
    s_add_u32 s{S_T0}, s{S_T0}, s{S_T1}
    s_add_u32 s{S_T0}, s{S_T0}, {WS_PART + 8192}
    v_cvt_pk_bf16_f32 v16, v16, v17
    v_cvt_pk_bf16_f32 v17, v18, v19
    v_and_or_b32 v16, v16, -2, s{S_TAG}
    buffer_store_dwordx2 v[16:17], v46, {WS}, s{S_T0} offen{ST}
    """)

def publish_flag(A, sval):
    A(f"""
    s_lshl_b32 s{S_T0}, s{S_RANK}, 6
    s_add_u32 s{S_T0}, s{S_T0}, {FL_CH}
    v_mov_b32 v10, s{sval}
    v_mov_b32 v11, 0
    s_mov_b64 exec, 1
    buffer_store_dword v10, v11, {WS}, s{S_T0} offen sc1
    s_mov_b64 exec, -1
    """)

def ensure_ready(A, sseg):
    l = A.lab(); lp = A.lab()
    A(f"""
    s_cmp_lt_u32 s{sseg}, s{S_READY}
    s_cbranch_scc1 {l}
    s_lshl_b32 s{S_T0}, s{S_RANK}, 6
    s_add_u32 s{S_T0}, s{S_T0}, {FL_T1}
    v_mov_b32 v40, 0
    {lp}:
    buffer_load_dword v41, v40, {WS}, s{S_T0} offen sc1
    buffer_load_dword v42, v40, {WS}, s{S_T0} offen offset:2048 sc1
    s_waitcnt vmcnt(0)
    v_readfirstlane_b32 s{S_T1}, v41
    v_readfirstlane_b32 s{S_T2}, v42
    s_lshl_b32 s{S_T1}, s{S_T1}, 1
    s_lshl_b32 s{S_T2}, s{S_T2}, 1
    s_add_u32 s{S_T2}, s{S_T2}, 1
    s_min_u32 s{S_READY}, s{S_T1}, s{S_T2}
    s_cmp_lt_u32 s{sseg}, s{S_READY}
    s_cbranch_scc0 {lp}
    {l}:
    """)

def io_fetch_kv(A, sseg):
    ensure_ready(A, sseg)
    A(f"""
    s_lshl_b32 s{S_KVOFF}, s{sseg}, 5
    s_add_u32 s{S_KVOFF}, s{S_KVOFF}, s{S_RANK}
    s_lshl_b32 s{S_KVOFF}, s{S_KVOFF}, 14
    s_add_u32 s{S_KVOFF}, s{S_KVOFF}, {WS_KV}
    """)
    for g in range(4):
        A(f"s_mov_b32 m0, {LDS_MISC + O_KV + g*4096}")
        A(f"s_add_u32 s{S_T0}, s{S_KVOFF}, {g*4096}")
        for i in range(4):
            A(f"buffer_load_dwordx4 v{V_KV}, {WS}, s{S_T0} offen offset:{i*1024} sc1 lds")

def io_prefetch(A):
    A(f"""
    s_add_u32 s{S_T1}, s{S_STEP}, 1
    s_min_u32 s{S_T1}, s{S_T1}, 63
    s_cmp_lt_u32 s{S_T1}, s{S_READY}
    s_cselect_b32 s{S_T1}, s{S_T1}, s{S_STEP}
    s_lshl_b32 s{S_T1}, s{S_T1}, 5
    s_add_u32 s{S_T1}, s{S_T1}, s{S_RANK}
    s_lshl_b32 s{S_T1}, s{S_T1}, 14
    s_add_u32 s{S_T0}, s{S_T1}, {WS_KV}
    v_lshlrev_b32 v11, 3, v{V_KV}
    buffer_load_dword v{V_TMP}, v11, {WS}, s{S_T0} offen sc1
    s_add_u32 s{S_T0}, s{S_T0}, 8192
    buffer_load_dword v{V_TMP}, v11, {WS}, s{S_T0} offen sc1
    s_and_b32 s{S_T1}, s{S_RANK}, 7
    s_mul_i32 s{S_T1}, s{S_T1}, 1152
    s_add_u32 s{S_T0}, s{S_SLOT}, s{S_T1}
    s_add_u32 s{S_T0}, s{S_T0}, {WS_MEM}
    s_mov_b64 exec, 0x1ff
    buffer_load_dword v{V_TMP}, v11, {WS}, s{S_T0} offen sc1
    s_mov_b64 exec, -1
    """)

def io_publish_kvm(A):
    for kk in range(4):
        A(f"ds_read_b64_tr_b16 v[{4*kk}:{4*kk+1}], v{V_QR} offset:{2048+512*kk}")
        A(f"ds_read_b64_tr_b16 v[{4*kk+2}:{4*kk+3}], v{V_QR} offset:{2048+512*kk+128}")
    A(f"v_subrev_u32 v45, 1536, v{V_VW}")
    for w in range(4): A(f"ds_read_b64 v[{16+2*w}:{17+2*w}], v45 offset:{512*w}")
    A(f"""
    s_lshl_b32 s{S_T0}, s{S_RANK}, 13
    s_add_u32 s{S_T0}, s{S_T0}, {WS_KVM}
    s_add_u32 s{S_T0}, s{S_T0}, s{S_KVMOFF}
    v_lshrrev_b32 v46, 1, v{V_KV}
    s_add_u32 s{S_T1}, s{S_T0}, 4096
    s_waitcnt lgkmcnt(0)
    """)
    for kk in range(4): A(f"buffer_store_dwordx4 v[{4*kk}:{4*kk+3}], v{V_KV}, {WS}, s{S_T0} offen offset:{1024*kk} sc1")
    for w in range(4): A(f"buffer_store_dwordx2 v[{16+2*w}:{17+2*w}], v46, {WS}, s{S_T1} offen offset:{512*w} sc1")

def gather_dma(A):
    A(f"""
    s_mul_i32 s{S_T0}, s{S_WAVE}, 3072
    s_add_u32 m0, s{S_T0}, {LDS_MISC + O_MEM}
    s_add_u32 s{S_T0}, s{S_T0}, s{S_SLOT}
    s_add_u32 s{S_T0}, s{S_T0}, {WS_MEM}
    """)
    for i in range(3):
        A(f"buffer_load_dwordx4 v{V_KV}, {WS}, s{S_T0} offen offset:{1024*i}{LDF[0]} lds")

def gen_sel(A, leftover):
    A(f"v_and_b32 v40, 15, v{V_LN}\nv_mov_b32 v43, 0x3f80")
    for d in range(4):
        j0 = (2*d) & 3 if leftover else 2*d
        A(f"v_subrev_u32 v41, {j0}, v40")
        A(f"v_lshlrev_b32 v42, 4, v41")
        A(f"v_cmp_gt_u32 vcc, 2, v41")
        A(f"v_lshlrev_b32 v42, v42, v43")
        A("s_nop 0")
        A(f"v_cndmask_b32 v{32+d}, 0, v42, vcc")

def window(A, ST):
    L = A.lab
    lw3 = L(); lb0 = L(); lleft = L(); lj = L(); lb1 = L(); lnr = L()
    W = S_WAVE
    A(f"s_cmp_eq_u32 s{W}, 3\ns_cbranch_scc1 {lw3}")
    A(f"s_cmp_eq_u32 s{S_RED}, 0\ns_cbranch_scc1 {lnr}")
    A(f"s_cmp_eq_u32 s{S_RED}, 2\ns_cbranch_scc1 {lleft}")
    def red(left):
        lab = L(); lab2 = L()
        gen_sel(A, left)
        if OPT['ackwait']: A("s_waitcnt vmcnt(0)")
        stamp(A, 9)
        for i in range(8):
            A(f"buffer_load_dwordx4 v[{4*i}:{4*i+3}], v{V_RL}, {WS}, s{S_U+i} offen{LDF[0]}")
        A("s_barrier")
        A(f"s_branch {lab2}")
        A(f"{lab}:")
        for i in range(8):
            A(f"buffer_load_dwordx4 v[{4*i}:{4*i+3}], v{V_RL}, {WS}, s{S_U+i} offen{LDF[0]}")
        A(f"{lab2}:")
        for i in range(8):
            A(f"s_waitcnt vmcnt({7-i})")
            if OPT.get('abs') and i == 0: stamp(A, 10)
            if OPT.get('abs') and i == 7: stamp(A, 11)
            c = "0" if i == 0 else "v[36:39]"
            A(f"v_mfma_f32_16x16x32_bf16 v[36:39], v[{4*i}:{4*i+3}], v[32:35], {c}")
        if left:
            for q in range(4):
                A(f"v_bitop3_b32 v41, v{8*q}, v{8*q+2}, s{S_TAG} bitop3:0x7e")
                A(f"v_bitop3_b32 v42, v{8*q+4}, v{8*q+6}, s{S_TAG} bitop3:0x7e")
                if q == 0: A("v_or_b32 v40, v41, v42")
                else: A("v_or3_b32 v40, v40, v41, v42")
        else:
            for q in range(4):
                A(f"v_bitop3_b32 v{40+q}, v{8*q}, v{8*q+4}, s{S_TAG} bitop3:0x7e")
            A("v_or3_b32 v40, v40, v41, v42\nv_or_b32 v40, v40, v43")
        cap(A, 58)
        A(f"v_and_b32 v40, 1, v40\nv_cmp_ne_u32 vcc, 0, v40\ns_cbranch_vccnz {lab}")
        stamp(A, 5)
        A("v_cvt_pk_bf16_f32 v40, v36, v37\nv_cvt_pk_bf16_f32 v41, v38, v39")
        A("v_min_u32 v40, -2, v40\nv_min_u32 v41, -2, v41")
        A(f"s_mov_b64 exec, s[{S_M_PUB}:{S_M_PUB+1}]")
        A(f"buffer_store_dwordx2 v[40:41], v{V_MP}, {WS}, s{S_SLOT} offen{ST}")
        A("s_mov_b64 exec, -1")
        if OPT['ackwait2']: A("s_waitcnt vmcnt(0)")
        stamp(A, 6)
    red(False)
    A(f"s_branch {lb0}")
    A(f"{lleft}:")
    red(True)
    A(f"s_branch {lb0}")
    A(f"{lnr}:")
    A("s_barrier")
    A(f"{lb0}:")
    A("s_barrier")
    lg = L()
    A(f"s_mul_i32 s{S_T0}, s{W}, 3072\ns_add_u32 s{S_T0}, s{S_T0}, s{S_SLOT}\ns_add_u32 s{S_T0}, s{S_T0}, {WS_MEM}")
    A(f"s_mul_i32 s{S_T1}, s{W}, 3072\nv_add_u32 v36, s{S_T1}, v{V_L16}")
    zero_acc1(A)
    A(f"{lg}:")
    for i in range(3):
        A(f"buffer_load_dwordx4 v[{12+4*i}:{15+4*i}], v{V_KV}, {WS}, s{S_T0} offen offset:{1024*i}{LDF[0]}")
    A("s_waitcnt vmcnt(0)")
    A("v_max3_u32 v37, v12, v14, v16\nv_max3_u32 v38, v18, v20, v22\nv_max_u32 v37, v37, v38")
    cap(A, 59)
    A(f"v_cmp_eq_u32 vcc, -1, v37\ns_cbranch_vccnz {lg}")
    stamp(A, 7)
    for i in range(3):
        A(f"ds_write_b128 v36, v[{12+4*i}:{15+4*i}] offset:{O_MEM + 1024*i}")
    A("s_waitcnt lgkmcnt(0)")
    A(f"s_branch {lb1}")
    A(f"{lw3}:")
    stamp(A, 9)
    A("s_barrier")
    A(f"s_add_u32 s{S_T3}, s{S_STEP}, 1")
    l63 = L()
    A(f"s_cmp_ge_u32 s{S_T3}, 63\ns_cbranch_scc1 {l63}")
    io_fetch_kv(A, S_T3)
    A(f"{l63}:")
    stamp(A, 5)
    A("s_barrier")
    zero_acc1(A)
    A("s_waitcnt vmcnt(0)")
    stamp(A, 7)
    A(f"{lb1}:")
    A("s_barrier")
```

```python
from asmlib import *

WS_XN   = 0x0000000
WS_Q    = 0x0400000
WS_KV   = 0x1400000
WS_KVM  = 0x3400000
WS_MEM  = 0x4400000
WS_PART = 0x4500000
WS_FLAG = 0x4600000
WS_PROF = 0x4700000
WS_SIZE = 0x10000000

FL_T1   = WS_FLAG
FL_CH   = WS_FLAG + 0x1000

DBG_T1 = 0
DBG_T2 = 32
DBG_VALID = 64
DBG_OVF = 96

S_X, S_MEM0, S_WQ, S_WK, S_WV, S_WO = 16, 18, 20, 22, 24, 26
S_W1, S_W3, S_W2, S_OUT, S_DBG, S_WS = 32, 34, 36, 38, 40, 42
SRD_WS = 4
SRD_DBG = 8
S_WAVE = 44
S_XCC = 45
S_RANK = 46

WS_H    = 0x4800000
WS_HN   = 0x4C00000
WS_P2   = 0x5000000
WS_P3   = 0x5800000
PBUF    = 32*32*1152
FL_XN   = WS_FLAG + 0x2000
FL_HN   = WS_FLAG + 0x4000
FL_P2   = WS_FLAG + 0x8000
FL_P3   = WS_FLAG + 0x9000

WS_SRD = f"s[{SRD_WS}:{SRD_WS+3}]"

def mk_srd(A, d, ptr, size):
    A(f"s_mov_b32 s{d}, s{ptr}\ns_mov_b32 s{d+1}, s{ptr+1}\ns_mov_b32 s{d+2}, {size}\ns_mov_b32 s{d+3}, 0x20000")

def arrive(A):
    l = A.lab()
    A(f"""
    s_cmp_eq_u32 s{S_WAVE}, 0
    s_cbranch_scc0 {l}
    s_lshl_b32 s60, s{S_XCC}, 2
    v_mov_b32 v6, s60
    v_mov_b32 v7, 1
    s_mov_b64 exec, 1
    buffer_atomic_add v7, v6, s[{SRD_DBG}:{SRD_DBG+3}], 0 offen offset:{DBG_T2} sc0
    s_waitcnt vmcnt(0)
    v_cmp_eq_u32 vcc, 31, v7
    s_and_b64 exec, exec, vcc
    v_mov_b32 v7, 1
    s_cbranch_execz {l}x
    buffer_store_dword v7, v6, s[{SRD_DBG}:{SRD_DBG+3}], 0 offen offset:{DBG_VALID} sc1
    {l}x:
    s_mov_b64 exec, -1
    {l}:
    """)

def wait_valid(A, vln):
    l = A.lab()
    A(f"""
    v_lshlrev_b32 v6, 2, v{vln}
    v_and_b32 v6, 28, v6
    {l}:
    buffer_load_dword v7, v6, s[{SRD_DBG}:{SRD_DBG+3}], 0 offen offset:{DBG_VALID} sc1
    s_waitcnt vmcnt(0)
    v_cmp_ne_u32 vcc, 1, v7
    s_cbranch_vccnz {l}
    """)

def poll_flag_ge(A, svaddr, sval, v0=6, v1=7, tmp=61):
    l = A.lab()
    A(f"""
    v_mov_b32 v{v0}, 0
    {l}:
    buffer_load_dword v{v1}, v{v0}, {WS_SRD}, s{svaddr} offen sc1
    s_waitcnt vmcnt(0)
    v_readfirstlane_b32 s{tmp}, v{v1}
    s_cmp_ge_u32 s{tmp}, s{sval}
    s_cbranch_scc0 {l}
    """)

def store_flag(A, svaddr, sval, ST=" sc1", v0=6, v1=7):
    A(f"""
    v_mov_b32 v{v0}, 0
    v_mov_b32 v{v1}, s{sval}
    s_mov_b64 exec, 1
    buffer_store_dword v{v1}, v{v0}, {WS_SRD}, s{svaddr} offen{ST}
    s_mov_b64 exec, -1
    """)
```

```python
from common import *
from loader import Job, schedule
import redux
from ln import fbits

S_TEAM = 47
S_T0, S_T1, S_T2, S_T3 = 60, 61, 62, 63
S_SEG = 64; S_IT = 65; S_B = 66; S_U0T = 67; S_D0T = 68; S_LOW = 69
S_PB = 70; S_FOWN = 71; S_FLINE = 72; S_U0 = 73; S_U1 = 74; S_HI = 75; S_NL2E = 76
SRD_W1 = 12; SRD_W3 = 48; SRD_W2 = 52; SRD_OUT = 56
V_LN, V_L16, V_PA, V_RL, V_LW, V_LR, V_AW, V_LF = 68, 69, 70, 71, 72, 73, 74, 75
V_SEL = 76
LDS_HN = 0; LDS_ACT = 36864; LDS_ROW = 46080; LDS_U4 = 55296; LDS_D4 = LDS_U4 + 36864
def FU(n, ks): return 80 + (n*18 + ks) * 4
def FD(n, ks): return 80 + 288 + (n*9 + ks) * 4

def ffn_role(A, safe=False):
    ST = " sc1" if safe else ""
    L = A.lab; W, R = S_WAVE, S_RANK
    A(f"v_and_b32 v{V_LN}, 63, v0\nv_lshlrev_b32 v{V_L16}, 4, v{V_LN}")
    A(f"""
    s_lshl_b32 s{S_FLINE}, s{S_TEAM}, 8
    s_add_u32 s{S_FLINE}, s{S_FLINE}, {FL_P3}
    s_lshl_b32 s{S_FOWN}, s{R}, 2
    s_add_u32 s{S_FOWN}, s{S_FOWN}, s{S_FLINE}
    s_mov_b32 s{S_T1}, 0
    """)
    store_flag(A, S_FOWN, S_T1, ST=ST)
    A("s_waitcnt vmcnt(0)\ns_barrier")
    arrive(A)
    mk_srd(A, SRD_W1, S_W1, 5308416); mk_srd(A, SRD_W3, S_W3, 5308416); mk_srd(A, SRD_W2, S_W2, 5308416); mk_srd(A, SRD_OUT, S_OUT, 2359296)
    A(f"""
    s_mul_i32 s{S_U0T}, s{W}, 5
    s_cmp_eq_u32 s{W}, 3
    s_cselect_b32 s{S_U0T}, 14, s{S_U0T}
    s_lshl_b32 s{S_D0T}, s{W}, 2
    s_cmp_eq_u32 s{W}, 3
    s_cselect_b32 s{S_D0T}, 13, s{S_D0T}
    s_cmp_lt_u32 s{W}, 2
    s_cselect_b32 s{S_LOW}, 1, 0
    """)
    STG = 13824
    VG_U, VG_D, VT_U1, VT_D = 0, 2, 3, 4
    A(f"""
    s_mul_i32 s{S_B}, s{W}, {STG}
    v_mul_u32_u24 v6, 13108, v{V_LN}
    v_lshrrev_b32 v6, 16, v6
    v_mul_u32_u24 v8, 5, v6
    v_sub_u32 v8, v{V_LN}, v8
    v_mul_u32_u24 v6, 9216, v6
    v_lshlrev_b32 v8, 4, v8
    v_add_u32 v6, v6, v8
    s_mul_i32 s{S_T0}, s{R}, 288
    s_lshl_b32 s{S_T1}, s{S_U0T}, 4
    s_add_u32 s{S_T0}, s{S_T0}, s{S_T1}
    v_add_u32 v{VG_U}, s{S_T0}, v6
    v_mul_u32_u24 v6, 3277, v{V_LN}
    v_lshrrev_b32 v6, 16, v6
    v_mul_u32_u24 v8, 20, v6
    v_sub_u32 v8, v{V_LN}, v8
    v_mul_u32_u24 v6, 1152, v6
    v_lshlrev_b32 v8, 4, v8
    v_add_u32 v6, v6, v8
    s_mul_i32 s{S_T0}, s{R}, {144*1152}
    s_lshl_b32 s{S_T1}, s{S_D0T}, 6
    s_add_u32 s{S_T0}, s{S_T0}, s{S_T1}
    v_add_u32 v{VG_D}, s{S_T0}, v6
    """)
    UROWS = 48
    UA = 3840
    A(f"""
    v_lshrrev_b32 v6, 4, v{V_LN}
    v_lshlrev_b32 v6, 3, v6
    v_bfe_u32 v8, v{V_LN}, 2, 2
    v_add_u32 v6, v6, v8
    v_mul_u32_u24 v6, 80, v6
    v_and_b32 v8, 1, v{V_LN}
    v_mul_u32_u24 v8, {UA}, v8
    v_add_u32 v6, v6, v8
    v_bfe_u32 v8, v{V_LN}, 1, 1
    v_lshlrev_b32 v8, 3, v8
    v_add_u32 v6, v6, v8
    v_add_u32 v{VT_U1}, s{S_B}, v6
    v_lshrrev_b32 v6, 5, v{V_LN}
    v_lshlrev_b32 v6, 3, v6
    v_bfe_u32 v8, v{V_LN}, 2, 2
    v_add_u32 v6, v6, v8
    v_mul_u32_u24 v6, 320, v6
    v_bfe_u32 v8, v{V_LN}, 4, 1
    v_lshlrev_b32 v8, 5, v8
    v_add_u32 v6, v6, v8
    v_and_b32 v8, 3, v{V_LN}
    v_lshlrev_b32 v8, 3, v8
    v_add_u32 v6, v6, v8
    v_add_u32 v{VT_D}, s{S_B}, v6
    """)
    A(f"""
    s_and_b32 s{S_T0}, s{W}, 1
    s_mul_i32 s{S_T1}, s{S_T0}, 18432
    s_add_u32 s{S_T1}, s{S_T1}, {LDS_U4}
    s_mul_i32 s{S_T2}, s{S_T0}, 9216
    s_add_u32 s{S_T2}, s{S_T2}, {LDS_D4}
    s_cmp_eq_u32 s{S_LOW}, 1
    s_cselect_b32 s{S_T1}, s{S_T1}, s{S_T2}
    v_add_u32 v{V_LF}, s{S_T1}, v{V_L16}
    """)
    M60 = "s_mov_b32 exec_lo, -1\ns_mov_b32 exec_hi, 0x0fffffff"
    def up_job(kb):
        pass
    UA2 = 2880
    def up_job(ks):
        def dma(A, area):
            A(M60)
            for m, srd in ((0, SRD_W1), (1, SRD_W3)):
                for i in range(3):
                    A(f"s_add_u32 m0, s{S_B}, {area[1] + m*UA + i*960}")
                    A(f"s_mov_b32 s{S_T0}, {(32*ks + 12*i) * 9216}")
                    A(f"buffer_load_dwordx4 v{VG_U}, s[{srd}:{srd+3}], s{S_T0} offen lds")
            A("s_mov_b64 exec, -1")
            return 6
        def consume(A, area):
            for n in range(5):
                for hf in range(2):
                    o = area[1] + 4*hf*80 + n*16
                    dst = FU(n, ks) + 2*hf if n < 4 else 16 + 2*hf
                    A(f"ds_read_b64_tr_b16 {r(dst, 2)}, v{VT_U1} offset:{o}")
            l = A.lab()
            A(f"s_cmp_eq_u32 s{S_LOW}, 1\ns_cbranch_scc0 {l}\ns_waitcnt lgkmcnt(0)")
            A(f"ds_write_b128 v{V_LF}, v[16:19] offset:{ks*1024}")
            A(f"{l}:")
        j = Job(UA + UA2, dma, consume); j.nd = 6; j.region = None
        return j
    def dn_job(ks):
        def dma(A, area):
            A(M60)
            for i in range(6):
                A(f"s_add_u32 m0, s{S_B}, {area[1] + i*960}")
                A(f"s_mov_b32 s{S_T0}, {(16*ks + 3*i) * 1152}")
                A(f"buffer_load_dwordx4 v{VG_D}, s[{SRD_W2}:{SRD_W2+3}], s{S_T0} offen lds")
            A("s_mov_b64 exec, -1")
            return 6
        def consume(A, area):
            for n in range(5):
                for hf in range(2):
                    o = area[1] + 4*hf*320 + n*64
                    dst = FD(n, ks) + 2*hf if n < 4 else 16 + 2*hf
                    A(f"ds_read_b64_tr_b16 {r(dst, 2)}, v{VT_D} offset:{o}")
            l = A.lab()
            A(f"s_cmp_eq_u32 s{S_LOW}, 0\ns_cbranch_scc0 {l}\ns_waitcnt lgkmcnt(0)")
            A(f"ds_write_b128 v{V_LF}, v[16:19] offset:{ks*1024}")
            A(f"{l}:")
        j = Job(5760, dma, consume); j.nd = 6; j.region = None
        return j
    jobs = [up_job(ks) for ks in range(18)] + [dn_job(ks) for ks in range(9)]
    schedule(A, jobs, [STG], maxout=40, align=64)
    A("s_barrier")
    wait_valid(A, V_LN)
    redux.partial_store_addr(A, V_PA, V_LN, R, 6)
    redux.reduce_consts(A, V_LN, V_RL, V_LW, V_LR, R, 6)
    redux.gen_sel(A, V_SEL, V_LN, 6)
    A(f"""
    v_and_b32 v6, 31, v{V_LN}
    v_lshlrev_b32 v6, 4, v6
    v_lshrrev_b32 v7, 5, v{V_LN}
    v_lshlrev_b32 v7, 3, v7
    v_add_u32 v6, v6, v7
    s_lshl_b32 s{S_T0}, s{S_U0T}, 9
    s_add_u32 s{S_T0}, s{S_T0}, {LDS_ACT}
    v_add_u32 v{V_AW}, s{S_T0}, v6
    s_mov_b32 s{S_HI}, 0xffff0000
    s_mov_b32 s{S_NL2E}, {fbits(-1.4426950408889634):#x}
    s_mov_b32 s{S_SEG}, s{S_TEAM}
    s_mov_b32 s{S_IT}, 0
    """)
    lloop = L("FF_LOOP")
    A(f"{lloop}:")
    A(f"s_lshl_b32 s{S_T0}, s{S_SEG}, 7\ns_add_u32 s{S_T0}, s{S_T0}, {FL_HN}\ns_mov_b32 s{S_T1}, 1")
    redux.team_wait(A, S_T0, S_T1, V_LN, 0, 1)
    A(f"""
    s_mul_i32 s{S_T0}, s{S_SEG}, 36864
    s_mul_i32 s{S_T1}, s{W}, 9216
    s_add_u32 s{S_T0}, s{S_T0}, s{S_T1}
    s_add_u32 s{S_T0}, s{S_T0}, {WS_HN}
    """)
    for g in range(3):
        A(f"s_add_u32 m0, s{S_T1}, {LDS_HN + g*3072}")
        A(f"s_add_u32 s{S_T2}, s{S_T0}, {g*3072}")
        for i in range(3):
            A(f"buffer_load_dwordx4 v{V_L16}, {WS_SRD}, s{S_T2} offen offset:{i*1024} sc1 lds")
    A("s_waitcnt vmcnt(0)\ns_barrier")
    BF = [40, 48]; UF = [56, 60]
    def rdb(ks):
        b = BF[ks & 1]
        A(f"ds_read_b128 v[{b}:{b+3}], v{V_L16} offset:{LDS_HN + (2*ks)*1024}")
        A(f"ds_read_b128 v[{b+4}:{b+7}], v{V_L16} offset:{LDS_HN + (2*ks+1)*1024}")
        A(f"ds_read_b128 v[{UF[ks&1]}:{UF[ks&1]+3}], v{V_LF} offset:{ks*1024}")
    rdb(0)
    for ks in range(18):
        if ks + 1 < 18: rdb(ks + 1)
        A(f"s_waitcnt lgkmcnt({3 if ks + 1 < 18 else 0})")
        b = BF[ks & 1]
        l5 = L()
        for n in range(5):
            if n == 4: A(f"s_cmp_eq_u32 s{S_LOW}, 0\ns_cbranch_scc1 {l5}")
            a_ = r(FU(n, ks), 4) if n < 4 else v(UF[ks & 1], 4)
            for tt in range(2):
                d = 8*n + 4*tt
                c = "0" if ks == 0 else v(d, 4)
                A(f"v_mfma_f32_16x16x32_bf16 v[{d}:{d+3}], {a_}, v[{b+4*tt}:{b+4*tt+3}], {c}")
        A(f"{l5}:")
    A("s_nop 7")
    lskip5 = L()
    for n in range(5):
        if n == 4: A(f"s_cmp_eq_u32 s{S_LOW}, 0\ns_cbranch_scc1 {lskip5}")
        d0, d1 = 8*n, 8*n + 4
        for rr in range(4): A(f"v_permlane16_swap_b32 v{d0+rr}, v{d1+rr}")
        for p in range(2):
            a, b = d0 + 2*p, d0 + 2*p + 1
            A(f"v_cvt_pk_bf16_f32 v40, v{a}, v{b}\nv_lshlrev_b32 v{a}, 16, v40\nv_and_b32 v{b}, s{S_HI}, v40")
            A(f"v_mul_f32 v41, s{S_NL2E}, v{a}\nv_mul_f32 v42, s{S_NL2E}, v{b}")
            A("v_exp_f32 v41, v41\nv_exp_f32 v42, v42\ns_nop 0")
            A("v_add_f32 v41, 1.0, v41\nv_add_f32 v42, 1.0, v42")
            A("v_rcp_f32 v41, v41\nv_rcp_f32 v42, v42\ns_nop 0")
            A(f"v_mul_f32 v{a}, v{a}, v41\nv_mul_f32 v{b}, v{b}, v42")
            A(f"v_cvt_pk_bf16_f32 v40, v{a}, v{b}\nv_lshlrev_b32 v{a}, 16, v40\nv_and_b32 v{b}, s{S_HI}, v40")
            ua, ub = d1 + 2*p, d1 + 2*p + 1
            A(f"v_cvt_pk_bf16_f32 v40, v{ua}, v{ub}\nv_lshlrev_b32 v{ua}, 16, v40\nv_and_b32 v{ub}, s{S_HI}, v40")
            A(f"v_mul_f32 v{a}, v{a}, v{ua}\nv_mul_f32 v{b}, v{b}, v{ub}")
            A(f"v_cvt_pk_bf16_f32 v{44+p}, v{a}, v{b}")
        A(f"ds_write_b64 v{V_AW}, v[44:45] offset:{512*n}")
    A(f"{lskip5}:")
    A("s_waitcnt lgkmcnt(0)\ns_barrier")
    A(f"""
    s_mul_i32 s{S_T0}, s{S_IT}, 1
    s_and_b32 s{S_T0}, s{S_T0}, 1
    s_lshl_b32 s{S_T1}, s{S_TEAM}, 1
    s_add_u32 s{S_T0}, s{S_T0}, s{S_T1}
    s_mul_i32 s{S_PB}, s{S_T0}, {PBUF}
    s_add_u32 s{S_PB}, s{S_PB}, {WS_P3}
    s_lshl_b32 s{S_T3}, s{S_D0T}, 6
    s_add_u32 s{S_T3}, s{S_T3}, s{S_PB}
    """)
    for ks in range(9): A(f"ds_read_b128 v[{4*ks}:{4*ks+3}], v{V_L16} offset:{LDS_ACT + 1024*ks}")
    ACC = [36, 52]
    ldn = L()
    for n in range(5):
        acc_ = ACC[n & 1]
        if n == 4:
            A(f"s_cmp_eq_u32 s{S_LOW}, 1\ns_cbranch_scc1 {ldn}")
        for ks in range(9):
            if n == 0: A(f"s_waitcnt lgkmcnt({8-ks})")
            c = "0" if ks == 0 else v(acc_, 16)
            if n < 4:
                A(f"v_mfma_f32_32x32x16_bf16 v[{acc_}:{acc_+15}], {r(FD(n, ks), 4)}, v[{4*ks}:{4*ks+3}], {c}")
            else:
                t = 52 + 4*(ks & 1)
                A(f"ds_read_b128 v[{t}:{t+3}], v{V_LF} offset:{ks*1024}\ns_waitcnt lgkmcnt(0)")
                A(f"v_mfma_f32_32x32x16_bf16 v[{acc_}:{acc_+15}], v[{t}:{t+3}], v[{4*ks}:{4*ks+3}], {c}")
        if n > 0:
            pass
        A("s_nop 7\ns_nop 3")
        dn_store(A, acc_, ST)
    A(f"{ldn}:")
    A(f"s_add_u32 s{S_IT}, s{S_IT}, 1")
    redux.team_signal(A, S_FOWN, S_IT, ST)
    redux.team_wait(A, S_FLINE, S_IT, V_LN, 0, 1)
    redux.reduce_rows(A, S_PB, V_LN, V_RL, V_SEL, V_LW, V_LR, 0, 40, LDS_ROW, S_U0, S_U1)
    lfin = L()
    A(f"s_cmp_eq_u32 s{W}, 0\ns_cbranch_scc0 {lfin}")
    finish(A)
    A(f"{lfin}:")
    A(f"s_add_u32 s{S_SEG}, s{S_SEG}, 3\ns_cmp_lt_u32 s{S_SEG}, 64\ns_cbranch_scc1 {lloop}")
    A("s_waitcnt vmcnt(0)\ns_endpgm")

def dn_store(A, acc_, ST):
    for b in range(2):
        for d in range(4):
            A(f"v_cvt_pk_bf16_f32 v{acc_+4*b+d}, v{acc_+8*b+2*d}, v{acc_+8*b+2*d+1}")
    for b in range(2):
        A(f"buffer_store_dwordx4 v[{acc_+4*b}:{acc_+4*b+3}], v{V_PA}, {WS_SRD}, s{S_T3} offen offset:{32*b}{ST}")
    A(f"s_add_u32 s{S_T3}, s{S_T3}, 64")

def finish(A):
    R = S_RANK
    X, T = 0, 16
    A(f"""
    s_lshl_b32 s{S_T0}, s{S_SEG}, 5
    s_add_u32 s{S_T0}, s{S_T0}, s{R}
    s_mul_i32 s{S_T0}, s{S_T0}, 1152
    s_add_u32 s{S_T1}, s{S_T0}, {WS_H}
    buffer_load_dwordx4 v[32:35], v{V_L16}, {WS_SRD}, s{S_T1} offen sc1
    s_mov_b64 exec, 0xff
    buffer_load_dwordx4 v[36:39], v{V_L16}, {WS_SRD}, s{S_T1} offen offset:1024 sc1
    s_mov_b64 exec, -1
    """)
    redux.sum_rows(A, V_LR, LDS_ROW, X, T)
    A("s_waitcnt vmcnt(0)")
    for d in range(8):
        a, b = X + 2*d, X + 2*d + 1
        A(f"v_cvt_pk_bf16_f32 v40, v{a}, v{b}\nv_lshlrev_b32 v{a}, 16, v40\nv_and_b32 v{b}, s{S_HI}, v40")
        A(f"v_lshlrev_b32 v41, 16, v{32+d}\nv_and_b32 v42, s{S_HI}, v{32+d}")
        A(f"v_add_f32 v{a}, v{a}, v41\nv_add_f32 v{b}, v{b}, v42")
        A(f"v_cvt_pk_bf16_f32 v{44+d}, v{a}, v{b}")
    A(f"""
    buffer_store_dwordx4 v[44:47], v{V_L16}, s[{SRD_OUT}:{SRD_OUT+3}], s{S_T0} offen
    s_mov_b64 exec, 0xff
    buffer_store_dwordx4 v[48:51], v{V_L16}, s[{SRD_OUT}:{SRD_OUT+3}], s{S_T0} offen offset:1024
    s_mov_b64 exec, -1
    """)
```

```python
from common import *
import struct
def fbits(x): return struct.unpack("<I", struct.pack("<f", x))[0]

def round_bf(A, x, t):
    A(f"v_cvt_pk_bf16_f32 v{t}, v{x}, v{x}\nv_lshlrev_b32 v{x}, 16, v{t}")

def sum8(A, x, t):
    A(f"""s_nop 1
    v_add_f32_dpp v{x}, v{x}, v{x} quad_perm:[1,0,3,2] row_mask:0xf bank_mask:0xf
    s_nop 1
    v_add_f32_dpp v{x}, v{x}, v{x} quad_perm:[2,3,0,1] row_mask:0xf bank_mask:0xf
    s_nop 1
    v_add_f32_dpp v{x}, v{x}, v{x} row_half_mirror row_mask:0xf bank_mask:0xf""")

def ln_prologue(A, sseg, vln, s_t0=60, s_t1=61):
    W = S_WAVE
    mk_srd(A, 12, S_X, 2359296)
    A(f"""
    v_lshrrev_b32 v120, 3, v{vln}
    s_lshl_b32 s{s_t0}, s{W}, 3
    v_add_u32 v120, s{s_t0}, v120
    v_and_b32 v119, 7, v{vln}
    v_mul_u32_u24 v118, 1152, v120
    v_lshlrev_b32 v117, 4, v119
    v_add_u32 v118, v118, v117
    s_mul_i32 s{s_t0}, s{sseg}, 36864
    """)
    for i in range(9):
        A(f"buffer_load_dwordx4 v[{4*i}:{4*i+3}], v118, s[12:15], s{s_t0} offen offset:{128*i}")
    A(f"""
    v_lshrrev_b32 v117, 1, v119
    v_lshlrev_b32 v117, 10, v117
    v_and_b32 v116, 1, v119
    v_lshlrev_b32 v116, 9, v116
    v_add_u32 v117, v117, v116
    v_lshlrev_b32 v116, 4, v120
    v_add_u32 v117, v117, v116
    s_add_u32 s{s_t0}, s{s_t0}, {WS_XN}
    s_mov_b32 s{s_t1}, 0xffff0000
    s_waitcnt vmcnt(0)
    """)
    X = 40
    for d in range(36):
        A(f"v_lshlrev_b32 v{X+2*d}, 16, v{d}\nv_and_b32 v{X+2*d+1}, s{s_t1}, v{d}")
    A(f"v_pk_add_f32 v[112:113], v[{X}:{X+1}], v[{X+2}:{X+3}]")
    for d in range(2, 36): A(f"v_pk_add_f32 v[112:113], v[112:113], v[{X+2*d}:{X+2*d+1}]")
    A("v_add_f32 v112, v112, v113")
    sum8(A, 112, 113)
    A(f"v_mul_f32 v112, {fbits(1.0/576):#x}, v112")
    A("v_mov_b32 v113, 0\nv_mov_b32 v114, 0")
    for d in range(36):
        A(f"v_sub_f32 v115, v{X+2*d}, v112\nv_sub_f32 v116, v{X+2*d+1}, v112")
        A(f"v_fmac_f32 v113, v115, v115\nv_fmac_f32 v114, v116, v116")
    A("v_add_f32 v113, v113, v114")
    sum8(A, 113, 114)
    A(f"v_mul_f32 v113, {fbits(1.0/576):#x}, v113")
    round_bf(A, 112, 114)
    round_bf(A, 113, 114)
    A(f"v_add_f32 v113, {fbits(1e-5):#x}, v113")
    round_bf(A, 113, 114)
    A("v_sqrt_f32 v113, v113\ns_nop 0")
    round_bf(A, 113, 114)
    A("v_rcp_f32 v113, v113\ns_nop 0")
    for d in range(36):
        a, b = X + 2*d, X + 2*d + 1
        A(f"v_sub_f32 v{a}, v{a}, v112\nv_sub_f32 v{b}, v{b}, v112")
        A(f"v_cvt_pk_bf16_f32 v114, v{a}, v{b}")
        A(f"v_lshlrev_b32 v{a}, 16, v114\nv_and_b32 v{b}, s{s_t1}, v114")
        A(f"v_mul_f32 v{a}, v{a}, v113\nv_mul_f32 v{b}, v{b}, v113")
        A(f"v_cvt_pk_bf16_f32 v{d}, v{a}, v{b}")
    for i in range(9):
        A(f"s_add_u32 s{s_t1}, s{s_t0}, {4096*i}")
        A(f"buffer_store_dwordx4 v[{4*i}:{4*i+3}], v117, {WS_SRD}, s{s_t1} offen sc1")
    l = A.lab()
    A(f"""
    s_waitcnt vmcnt(0)
    s_barrier
    s_cmp_eq_u32 s{W}, 0
    s_cbranch_scc0 {l}
    s_lshl_b32 s{s_t0}, s{sseg}, 2
    s_add_u32 s{s_t0}, s{s_t0}, {FL_XN}
    s_mov_b32 s{s_t1}, 1
    """)
    store_flag(A, s_t0, s_t1)
    A(f"{l}:")
```

```python
from asmlib import *

class Job:
    def __init__(self, size, dma, consume, fixed=None, region=None):
        self.size = size
        self.dma = dma
        self.consume = consume
        self.fixed = fixed
        self.ndma = None

def schedule(A, jobs, regions, maxout=60, align=256):
    busy = []
    issued = []
    total = 0
    def find(job):
        if job.fixed is not None:
            rg, off = job.fixed
            for (r2, a, b) in busy:
                if r2 == rg and not (off + job.size <= a or b <= off): return None
            return (rg, off)
        for rg, sz in enumerate(regions):
            if job.region is not None and rg not in job.region: continue
            off = 0
            while off + job.size <= sz:
                conflict = None
                for (r2, a, b) in busy:
                    if r2 == rg and not (off + job.size <= a or b <= off):
                        conflict = b if conflict is None else max(conflict, b)
                if conflict is None: return (rg, off)
                off = (conflict + align - 1) // align * align
        return None
    for j in jobs:
        if not hasattr(j, 'region'): j.region = None
    nxt = 0
    done = 0
    ci = 0
    while ci < len(jobs):
        while nxt < len(jobs):
            j = jobs[nxt]
            outstanding = total - done
            if outstanding + j.nd > maxout: break
            area = find(j)
            if area is None: break
            n = j.dma(A, area)
            assert n == j.nd, (n, j.nd)
            total += n
            busy.append((area[0], area[1], area[1] + j.size))
            issued.append((j, area, total))
            nxt += 1
        assert ci < len(issued), "deadlock in loader schedule"
        j, area, end = issued[ci]
        A(f"s_waitcnt vmcnt({total - end})")
        done = end
        j.consume(A, area)
        A("s_waitcnt lgkmcnt(0)")
        busy.remove((area[0], area[1], area[1] + j.size))
        ci += 1
```

```python
from common import *

def gen_sel(A, d0, vln, t0):
    A(f"v_and_b32 v{t0}, 15, v{vln}\nv_mov_b32 v{t0+3}, 0x3f80")
    for d in range(4):
        A(f"v_subrev_u32 v{t0+1}, {2*d}, v{t0}")
        A(f"v_lshlrev_b32 v{t0+2}, 4, v{t0+1}")
        A(f"v_cmp_gt_u32 vcc, 2, v{t0+1}")
        A(f"v_lshlrev_b32 v{t0+2}, v{t0+2}, v{t0+3}")
        A("s_nop 0")
        A(f"v_cndmask_b32 v{d0+d}, 0, v{t0+2}, vcc")

def partial_store_addr(A, vdst, vln, s_rank, t):
    A(f"""
    v_and_b32 v{t}, 31, v{vln}
    v_mul_u32_u24 v{t}, 36864, v{t}
    v_lshrrev_b32 v{vdst}, 5, v{vln}
    v_lshlrev_b32 v{vdst}, 4, v{vdst}
    v_add_u32 v{vdst}, v{vdst}, v{t}
    s_mul_i32 s60, s{s_rank}, 1152
    v_add_u32 v{vdst}, s60, v{vdst}
    """)

def store_tile(A, acc, vaddr, s_base, s_ntoff, tmp, ST):
    for b in range(2):
        for d in range(4):
            A(f"v_cvt_pk_bf16_f32 v{tmp+4*b+d}, v{acc+8*b+2*d}, v{acc+8*b+2*d+1}")
        A(f"buffer_store_dwordx4 v[{tmp+4*b}:{tmp+4*b+3}], v{vaddr}, {WS_SRD}, s{s_ntoff} offen offset:{32*b}{ST}")

def team_signal(A, s_flagaddr, s_val, ST, t0=6, t1=7):
    l = A.lab()
    A(f"s_waitcnt vmcnt(0)\ns_barrier\ns_cmp_eq_u32 s{S_WAVE}, 0\ns_cbranch_scc0 {l}")
    store_flag(A, s_flagaddr, s_val, ST=ST, v0=t0, v1=t1)
    A(f"{l}:")

def team_wait(A, s_flagline, s_val, vln, t0, t1):
    l = A.lab()
    A(f"""
    v_and_b32 v{t0}, 31, v{vln}
    v_lshlrev_b32 v{t0}, 2, v{t0}
    {l}:
    buffer_load_dword v{t1}, v{t0}, {WS_SRD}, s{s_flagline} offen sc1
    s_waitcnt vmcnt(0)
    v_cmp_gt_u32 vcc, s{s_val}, v{t1}
    s_cbranch_vccnz {l}
    """)

def reduce_rows(A, s_pbase, vln, v_rl, v_sel, v_lw, v_lr, D, ACC, LDS_ROW, s_u0, s_u1):
    A(f"s_mov_b32 s{s_u0}, s{s_pbase}\ns_add_u32 s{s_u1}, s{s_pbase}, {4*1152}")
    n = 0
    for G in range(5):
        for i in range(2):
            su = s_u0 if i == 0 else s_u1
            A(f"buffer_load_dwordx4 v[{D+4*n}:{D+4*n+3}], v{v_rl}, {WS_SRD}, s{su} offen offset:{256*G} sc1")
            n += 1
    n = 0
    for G in range(5):
        for i in range(2):
            A(f"s_waitcnt vmcnt({9-n})")
            c = "0" if i == 0 else v(ACC+4*G, 4)
            A(f"v_mfma_f32_16x16x32_bf16 v[{ACC+4*G}:{ACC+4*G+3}], v[{D+4*n}:{D+4*n+3}], v[{v_sel}:{v_sel+3}], {c}")
            n += 1
    A("s_nop 7")
    A("s_mov_b32 exec_lo, 0x00ff00ff\ns_mov_b32 exec_hi, 0x00ff00ff")
    for G in range(5):
        if G == 4: A("s_mov_b32 exec_hi, 0")
        for rr in range(4):
            o = (128*G + 16*(rr >> 1) + 4*(rr & 1)) * 4
            A(f"ds_write_b32 v{v_lw}, v{ACC+4*G+rr} offset:{LDS_ROW + o}")
    A("s_mov_b64 exec, -1\ns_waitcnt lgkmcnt(0)\ns_barrier")

def reduce_consts(A, vln, v_rl, v_lw, v_lr, s_rank, t):
    A(f"""
    v_lshrrev_b32 v{t}, 4, v{vln}
    s_lshl_b32 s60, s{S_WAVE}, 3
    v_add_u32 v{t}, s60, v{t}
    v_mul_u32_u24 v{t}, 1152, v{t}
    v_and_b32 v{v_rl}, 15, v{vln}
    v_lshlrev_b32 v{v_rl}, 4, v{v_rl}
    v_add_u32 v{v_rl}, v{v_rl}, v{t}
    s_mul_i32 s60, s{s_rank}, 36864
    v_add_u32 v{v_rl}, s60, v{v_rl}
    v_lshrrev_b32 v{t}, 4, v{vln}
    v_lshlrev_b32 v{t}, 7, v{t}
    v_bfe_u32 v{v_lw}, v{vln}, 2, 1
    v_lshlrev_b32 v{v_lw}, 5, v{v_lw}
    v_add_u32 v{v_lw}, v{v_lw}, v{t}
    v_and_b32 v{t}, 3, v{vln}
    v_lshlrev_b32 v{t}, 2, v{t}
    v_add_u32 v{v_lw}, v{v_lw}, v{t}
    s_mul_i32 s60, s{S_WAVE}, 2304
    v_add_u32 v{v_lw}, s60, v{v_lw}
    v_lshlrev_b32 v{v_lr}, 5, v{vln}
    """)

def sum_rows(A, v_lr, LDS_ROW, X, T):
    for st in range(2):
        if st == 1:
            for i in range(8): A(f"v_mov_b32 v{X+8+i}, 0")
            A("s_mov_b64 exec, 0xff")
        for w in range(4):
            dst = X + 8*st if w == 0 else T + 8*0
            o = LDS_ROW + w*2304 + st*2048
            A(f"ds_read_b128 v[{dst}:{dst+3}], v{v_lr} offset:{o}")
            A(f"ds_read_b128 v[{dst+4}:{dst+7}], v{v_lr} offset:{o+16}")
            if w > 0:
                A("s_waitcnt lgkmcnt(0)")
                for i in range(0, 8, 2):
                    A(f"v_pk_add_f32 v[{X+8*st+i}:{X+8*st+i+1}], v[{X+8*st+i}:{X+8*st+i+1}], v[{T+i}:{T+i+1}]")
        if st == 1: A("s_mov_b64 exec, -1")

def wave_sum(A, x, t):
    A(f"""s_nop 1
    v_add_f32_dpp v{x}, v{x}, v{x} quad_perm:[1,0,3,2] row_mask:0xf bank_mask:0xf
    s_nop 1
    v_add_f32_dpp v{x}, v{x}, v{x} quad_perm:[2,3,0,1] row_mask:0xf bank_mask:0xf
    s_nop 1
    v_add_f32_dpp v{x}, v{x}, v{x} row_half_mirror row_mask:0xf bank_mask:0xf
    s_nop 1
    v_add_f32_dpp v{x}, v{x}, v{x} row_ror:8 row_mask:0xf bank_mask:0xf
    v_mov_b32 v{t}, v{x}
    s_nop 1
    v_permlane32_swap_b32 v{x}, v{t}
    v_add_f32 v{x}, v{x}, v{t}
    v_mov_b32 v{t}, v{x}
    s_nop 1
    v_permlane16_swap_b32 v{x}, v{t}
    v_add_f32 v{x}, v{x}, v{t}""")
```

```python
from common import *
from loader import Job, schedule

S_TEAM = 47
S_SEG = 62; S_T0 = 60; S_T1 = 61; S_T2 = 63
SRD_W = {'q': 12, 'k': 48, 'v': 52}
S_B = 64
S_CNT = 65
S_BUF = 66
S_FL = 67
V_LN, V_XA, V_L16, V_QS, V_VS = 70, 71, 72, 73, 74
WREG0 = 80
def FR(X, ks): return WREG0 + (({'q': 0, 'k': 1, 'v': 2}[X]) * 36 + ks) * 4

def t1_role(A, safe=False):
    L = A.lab; W, R = S_WAVE, S_RANK
    A(f"v_and_b32 v{V_LN}, 63, v0\nv_lshlrev_b32 v{V_L16}, 4, v{V_LN}")
    A(f"""
    s_lshl_b32 s{S_FL}, s{S_TEAM}, 11
    s_lshl_b32 s{S_T0}, s{R}, 6
    s_add_u32 s{S_FL}, s{S_FL}, s{S_T0}
    s_add_u32 s{S_FL}, s{S_FL}, {FL_T1}
    s_mov_b32 s{S_CNT}, 0
    """)
    store_flag(A, S_FL, S_CNT)
    A("s_waitcnt vmcnt(0)\ns_barrier")
    arrive(A)
    for X, p in (('q', S_WQ), ('k', S_WK), ('v', S_WV)): mk_srd(A, SRD_W[X], p, 4718592)
    VG, VT = 0, 2
    A(f"""
    v_mov_b32 v1, v{V_LN}
    s_mul_i32 s{S_B}, s{W}, 40960
    v_lshrrev_b32 v6, 2, v1
    v_lshlrev_b32 v6, 13, v6
    v_and_b32 v7, 3, v1
    v_lshlrev_b32 v8, 4, v7
    v_add_u32 v6, v6, v8
    s_lshl_b32 s{S_T0}, s{R}, 8
    s_lshl_b32 s{S_T1}, s{W}, 6
    s_add_u32 s{S_T0}, s{S_T0}, s{S_T1}
    v_add_u32 v{VG}, s{S_T0}, v6
    """)
    A(f"""
    v_lshrrev_b32 v6, 5, v1
    v_lshlrev_b32 v6, 3, v6
    v_bfe_u32 v8, v1, 2, 2
    v_add_u32 v6, v6, v8
    v_lshlrev_b32 v6, 6, v6
    v_bfe_u32 v8, v1, 4, 1
    v_lshlrev_b32 v8, 5, v8
    v_add_u32 v6, v6, v8
    v_lshlrev_b32 v7, 3, v7
    v_add_u32 v6, v6, v7
    v_add_u32 v{VT}, s{S_B}, v6
    """)
    def job(X, kb):
        srd = SRD_W[X]
        def dma(A, area):
            for i in range(4):
                A(f"s_add_u32 m0, s{S_B}, {area[1] + i*1024}")
                A(f"s_mov_b32 s{S_T0}, {(64*kb + 16*i) * 8192}")
                A(f"buffer_load_dwordx4 v{VG}, s[{srd}:{srd+3}], s{S_T0} offen lds")
            return 4
        def consume(A, area):
            for q in range(4):
                for hf in range(2):
                    o = area[1] + (16*q + 4*hf) * 64
                    A(f"ds_read_b64_tr_b16 {r(FR(X, 4*kb+q) + 2*hf, 2)}, v{VT} offset:{o}")
        j = Job(4096, dma, consume); j.nd = 4; j.region = None
        return j
    jobs = [job(X, kb) for X in 'kvq' for kb in range(9)]
    schedule(A, jobs, [40960], maxout=40, align=256)
    A("s_barrier")
    wait_valid(A, V_LN)
    lp = L()
    A(f"""
    v_lshlrev_b32 v6, 2, v{V_LN}
    s_mov_b32 s{S_T0}, {FL_XN}
    {lp}:
    buffer_load_dword v7, v6, {WS_SRD}, s{S_T0} offen sc1
    s_waitcnt vmcnt(0)
    v_cmp_ne_u32 vcc, 1, v7
    s_cbranch_vccnz {lp}
    """)
    A(f"""
    v_and_b32 v1, 15, v{V_LN}
    v_lshlrev_b32 v1, 4, v1
    v_bfe_u32 v2, v{V_LN}, 4, 1
    v_lshlrev_b32 v2, 12, v2
    v_add_u32 v1, v1, v2
    v_lshrrev_b32 v2, 5, v{V_LN}
    v_lshlrev_b32 v3, 9, v2
    v_add_u32 v1, v1, v3
    s_lshl_b32 s{S_T0}, s{W}, 10
    v_add_u32 v{V_QS}, s{S_T0}, v1
    v_and_b32 v1, 15, v{V_LN}
    v_lshlrev_b32 v1, 4, v1
    v_bfe_u32 v3, v{V_LN}, 4, 1
    v_lshlrev_b32 v3, 10, v3
    v_add_u32 v1, v1, v3
    v_lshlrev_b32 v3, 8, v2
    v_add_u32 v1, v1, v3
    s_lshl_b32 s{S_T0}, s{W}, 11
    s_add_u32 s{S_T0}, s{S_T0}, 8192
    v_add_u32 v{V_VS}, s{S_T0}, v1
    """)
    A(f"s_mov_b32 s{S_SEG}, s{S_TEAM}\ns_mov_b32 s{S_BUF}, 0")
    def fetch_xn(sseg, sbuf):
        A(f"""
        s_mul_i32 s{S_T0}, s{sseg}, 36864
        s_mul_i32 s{S_T1}, s{W}, 9216
        s_add_u32 s{S_T0}, s{S_T0}, s{S_T1}
        s_add_u32 s{S_T0}, s{S_T0}, {WS_XN}
        s_add_u32 s{S_T1}, s{S_T1}, s{sbuf}
        """)
        for g in range(3):
            A(f"s_add_u32 m0, s{S_T1}, {g*3072}")
            A(f"s_add_u32 s{S_T2}, s{S_T0}, {g*3072}")
            for i in range(3):
                A(f"buffer_load_dwordx4 v{V_L16}, {WS_SRD}, s{S_T2} offen offset:{i*1024} sc1 lds")
    fetch_xn(S_SEG, S_BUF)
    lloop = L("T1_LOOP"); ldone = L("T1_DONE"); lnof = L()
    A(f"{lloop}:")
    A("s_waitcnt vmcnt(0)\ns_barrier")
    A(f"""
    s_add_u32 s{S_T0}, s{S_SEG}, 2
    s_cmp_ge_u32 s{S_T0}, 64
    s_cbranch_scc1 {lnof}
    s_mov_b32 s68, s{S_T0}
    s_xor_b32 s69, s{S_BUF}, 36864
    """)
    fetch_xn(68, 69)
    A(f"{lnof}:")
    A(f"v_add_u32 v{V_XA}, s{S_BUF}, v{V_L16}")
    XB = [48, 52, 56]
    def rd(ks): A(f"ds_read_b128 v[{XB[ks%3]}:{XB[ks%3]+3}], v{V_XA} offset:{ks*1024}")
    rd(0); rd(1)
    for ks in range(36):
        if ks + 2 < 36: rd(ks + 2)
        A(f"s_waitcnt lgkmcnt({min(2, 35-ks)})")
        x = v(XB[ks % 3], 4)
        for X, a in (('k', 16), ('q', 0), ('v', 32)):
            c = "0" if ks == 0 else v(a, 16)
            if X == 'v': A(f"v_mfma_f32_32x32x16_bf16 v[{a}:{a+15}], {x}, {r(FR(X, ks), 4)}, {c}")
            else: A(f"v_mfma_f32_32x32x16_bf16 v[{a}:{a+15}], {r(FR(X, ks), 4)}, {x}, {c}")
    A(f"""
    s_lshl_b32 s{S_T0}, s{S_SEG}, 5
    s_add_u32 s{S_T0}, s{S_T0}, s{R}
    s_lshl_b32 s{S_T1}, s{S_T0}, 14
    s_add_u32 s{S_T1}, s{S_T1}, {WS_KV}
    s_lshl_b32 s{S_T0}, s{S_T0}, 13
    s_add_u32 s{S_T0}, s{S_T0}, {WS_Q}
    s_nop 7
    """)
    def qk_store(a, soff):
        for b in range(2):
            base = a + 8*b
            for d in range(4): A(f"v_cvt_pk_bf16_f32 v{60+d}, v{base+2*d}, v{base+2*d+1}") if b == 0 else A(f"v_cvt_pk_bf16_f32 v{64+d}, v{base+2*d}, v{base+2*d+1}")
            rr = 60 if b == 0 else 64
            A(f"buffer_store_dwordx4 v[{rr}:{rr+3}], v{V_QS}, {WS_SRD}, s{soff} offen offset:{256*b} sc1")
    qk_store(16, S_T1)
    A("s_nop 1")
    qk_store(0, S_T0)
    A("s_nop 7")
    for a in range(2):
        rr = 60 if a == 0 else 64
        for n, qd in enumerate((a, a + 2)):
            A(f"v_cvt_pk_bf16_f32 v{rr+2*n}, v{32+4*qd}, v{33+4*qd}")
            A(f"v_cvt_pk_bf16_f32 v{rr+2*n+1}, v{34+4*qd}, v{35+4*qd}")
        A(f"buffer_store_dwordx4 v[{rr}:{rr+3}], v{V_VS}, {WS_SRD}, s{S_T1} offen offset:{512*a} sc1")
    lw = L()
    A(f"""
    s_waitcnt vmcnt(0)
    s_barrier
    s_add_u32 s{S_CNT}, s{S_CNT}, 1
    s_cmp_eq_u32 s{W}, 0
    s_cbranch_scc0 {lw}
    """)
    store_flag(A, S_FL, S_CNT, v0=60, v1=61)
    A(f"""
    {lw}:
    s_add_u32 s{S_SEG}, s{S_SEG}, 2
    s_xor_b32 s{S_BUF}, s{S_BUF}, 36864
    s_cmp_lt_u32 s{S_SEG}, 64
    s_cbranch_scc1 {lloop}
    s_waitcnt vmcnt(0)
    s_endpgm
    """)
```

```python
from common import *
from loader import Job, schedule
import redux, ln
from ln import fbits, round_bf

S_TEAM = 47
S_T0, S_T1, S_T2, S_T3 = 60, 61, 62, 63
S_SEG = 64; S_IT = 65; S_B = 66; S_NT0 = 67; S_NTL = 68
S_RDY1 = 69; S_PB = 70; S_FOWN = 71; S_FLINE = 72; S_U0 = 73; S_U1 = 74; S_NX = 75
S_MASK = 76
S_M32 = 92
S_SC = 94; S_L2E = 95; S_HI = 96; S_RCH = 97
SRD_WO_ = 48; SRD_X = 52
V_LN, V_L16, V_PA, V_RL, V_LW, V_LR, V_OW, V_WM = 220, 221, 222, 223, 224, 225, 226, 227
V_SEL = 228
TM, T1, T2 = 84, 88, 92
LDS_O = 0; LDS_ROW = 8192

def xlane(A, op, x, t):
    A(f"""
    v_mov_b32 v{t}, v{x}
    s_nop 1
    v_permlane32_swap_b32 v{x}, v{t}
    {op} v{x}, v{x}, v{t}
    v_mov_b32 v{t}, v{x}
    s_nop 1
    v_permlane16_swap_b32 v{x}, v{t}
    {op} v{x}, v{x}, v{t}
    """)

def ensure_t1(A, sseg):
    l = A.lab(); lp = A.lab()
    A(f"""
    s_cmp_lt_u32 s{sseg}, s{S_RDY1}
    s_cbranch_scc1 {l}
    s_lshl_b32 s{S_T0}, s{S_RANK}, 6
    s_add_u32 s{S_T0}, s{S_T0}, {FL_T1}
    v_mov_b32 v232, 0
    {lp}:
    buffer_load_dword v233, v232, {WS_SRD}, s{S_T0} offen sc1
    buffer_load_dword v234, v232, {WS_SRD}, s{S_T0} offen offset:2048 sc1
    s_waitcnt vmcnt(0)
    v_readfirstlane_b32 s{S_T1}, v233
    v_readfirstlane_b32 s{S_T2}, v234
    s_lshl_b32 s{S_T1}, s{S_T1}, 1
    s_lshl_b32 s{S_T2}, s{S_T2}, 1
    s_add_u32 s{S_T2}, s{S_T2}, 1
    s_min_u32 s{S_RDY1}, s{S_T1}, s{S_T2}
    s_cmp_lt_u32 s{sseg}, s{S_RDY1}
    s_cbranch_scc0 {lp}
    {l}:
    """)

def load_qkv(A, sseg):
    ensure_t1(A, sseg)
    W = S_WAVE
    A(f"""
    s_lshl_b32 s{S_T0}, s{sseg}, 5
    s_add_u32 s{S_T0}, s{S_T0}, s{S_RANK}
    s_lshl_b32 s{S_T1}, s{S_T0}, 14
    s_add_u32 s{S_T1}, s{S_T1}, {WS_KV}
    s_lshl_b32 s{S_T0}, s{S_T0}, 13
    s_add_u32 s{S_T0}, s{S_T0}, {WS_Q}
    s_and_b32 s{S_T2}, s{W}, 1
    s_lshl_b32 s{S_T2}, s{S_T2}, 12
    s_add_u32 s{S_T0}, s{S_T0}, s{S_T2}
    """)
    for kk in range(4): A(f"buffer_load_dwordx4 v[{4*kk}:{4*kk+3}], v{V_L16}, {WS_SRD}, s{S_T0} offen offset:{1024*kk} sc1")
    for kt in range(2):
        if kt: A(f"s_add_u32 s{S_T1}, s{S_T1}, 4096")
        for kk in range(4): A(f"buffer_load_dwordx4 v[{16+16*kt+4*kk}:{19+16*kt+4*kk}], v{V_L16}, {WS_SRD}, s{S_T1} offen offset:{1024*kk} sc1")
    A(f"""
    s_lshr_b32 s{S_T2}, s{W}, 1
    s_lshl_b32 s{S_T2}, s{S_T2}, 12
    s_add_u32 s{S_T1}, s{S_T1}, s{S_T2}
    s_add_u32 s{S_T1}, s{S_T1}, 4096
    """)
    for t in range(4): A(f"buffer_load_dwordx4 v[{64+4*t}:{67+4*t}], v{V_L16}, {WS_SRD}, s{S_T1} offen offset:{1024*t} sc1")

def t2_role(A, safe=False):
    ST = " sc1" if safe else ""
    L = A.lab; W, R = S_WAVE, S_RANK
    A(f"v_and_b32 v{V_LN}, 63, v0\nv_lshlrev_b32 v{V_L16}, 4, v{V_LN}")
    A(f"""
    s_lshl_b32 s{S_SEG}, s{R}, 1
    s_add_u32 s{S_SEG}, s{S_SEG}, s{S_TEAM}
    s_lshl_b32 s{S_T0}, s{S_SEG}, 2
    s_add_u32 s{S_T0}, s{S_T0}, {FL_XN}
    s_mov_b32 s{S_T1}, 0
    s_lshl_b32 s{S_FLINE}, s{S_TEAM}, 8
    s_add_u32 s{S_FLINE}, s{S_FLINE}, {FL_P2}
    s_lshl_b32 s{S_FOWN}, s{R}, 2
    s_add_u32 s{S_FOWN}, s{S_FOWN}, s{S_FLINE}
    """)
    store_flag(A, S_T0, S_T1)
    store_flag(A, S_FOWN, S_T1, ST=ST)
    A(f"""
    v_lshlrev_b32 v6, 8, v{V_LN}
    s_lshl_b32 s{S_T0}, s{S_TEAM}, 7
    s_lshl_b32 s{S_T2}, s{R}, 2
    s_add_u32 s{S_T0}, s{S_T0}, s{S_T2}
    s_add_u32 s{S_T0}, s{S_T0}, {FL_HN}
    v_mov_b32 v7, 0
    s_mov_b32 exec_hi, 0
    buffer_store_dword v7, v6, {WS_SRD}, s{S_T0} offen sc1
    s_mov_b64 exec, -1
    s_waitcnt vmcnt(0)
    s_barrier
    """)
    arrive(A)
    ln.ln_prologue(A, S_SEG, V_LN)
    mk_srd(A, SRD_WO_, S_WO, 4718592)
    mk_srd(A, SRD_X, S_X, 2359296)
    A(f"""
    s_mul_i32 s{S_NT0}, s{W}, 5
    s_cmp_eq_u32 s{W}, 3
    s_cselect_b32 s{S_NT0}, 14, s{S_NT0}
    s_cmp_lt_u32 s{W}, 2
    s_cselect_b32 s{S_NTL}, 5, 4
    s_mul_i32 s{S_B}, s{W}, 40960
    v_mul_u32_u24 v6, 3277, v{V_LN}
    v_lshrrev_b32 v6, 16, v6
    v_mul_u32_u24 v8, 20, v6
    v_sub_u32 v8, v{V_LN}, v8
    v_mul_u32_u24 v6, 1152, v6
    v_lshlrev_b32 v8, 4, v8
    v_add_u32 v6, v6, v8
    s_mul_i32 s{S_T0}, s{R}, 147456
    s_lshl_b32 s{S_T1}, s{S_NT0}, 6
    s_add_u32 s{S_T0}, s{S_T0}, s{S_T1}
    v_add_u32 v0, s{S_T0}, v6
    v_lshrrev_b32 v6, 5, v{V_LN}
    v_lshlrev_b32 v6, 3, v6
    v_bfe_u32 v8, v{V_LN}, 2, 2
    v_add_u32 v6, v6, v8
    v_mul_u32_u24 v6, 320, v6
    v_bfe_u32 v8, v{V_LN}, 4, 1
    v_lshlrev_b32 v8, 5, v8
    v_add_u32 v6, v6, v8
    v_and_b32 v8, 3, v{V_LN}
    v_lshlrev_b32 v8, 3, v8
    v_add_u32 v6, v6, v8
    v_add_u32 v2, s{S_B}, v6
    s_barrier
    """)
    A("s_mov_b32 exec_lo, -1\ns_mov_b32 exec_hi, 0x0fffffff")
    for i in range(43):
        if i == 42: A("s_mov_b32 exec_hi, 0xff")
        A(f"s_add_u32 m0, s{S_B}, {i*960}")
        A(f"s_mov_b32 s{S_T0}, {3*i*1152}")
        A(f"buffer_load_dwordx4 v0, s[{SRD_WO_}:{SRD_WO_+3}], s{S_T0} offen lds")
    A("s_mov_b64 exec, -1\ns_waitcnt vmcnt(0)")
    for n in range(5):
        for ks in range(8):
            for hf in range(2):
                A(f"ds_read_b64_tr_b16 a[{n*32+ks*4+2*hf}:{n*32+ks*4+2*hf+1}], v2 offset:{(16*ks + 4*hf)*320 + n*64}")
        A("s_waitcnt lgkmcnt(0)")
    A("s_barrier")
    wait_valid(A, V_LN)
    redux.partial_store_addr(A, V_PA, V_LN, R, 6)
    redux.reduce_consts(A, V_LN, V_RL, V_LW, V_LR, R, 6)
    redux.gen_sel(A, V_SEL, V_LN, 6)
    A(f"""
    s_and_b32 s{S_T0}, s{W}, 1
    s_lshl_b32 s{S_T0}, s{S_T0}, 4
    v_and_b32 v6, 15, v{V_LN}
    v_add_u32 v6, s{S_T0}, v6
    v_lshrrev_b32 v7, 4, v{V_LN}
    v_lshlrev_b32 v8, 2, v7
    v_sub_u32 v8, v6, v8
    """)
    for kt in range(2):
        for rr in range(4):
            p = S_MASK + 2*(4*kt + rr)
            A(f"v_cmp_le_i32 s[{p}:{p+1}], {16*kt + rr}, v8")
    A(f"""
    v_lshlrev_b32 v6, 4, v6
    v_lshrrev_b32 v8, 1, v7
    v_lshlrev_b32 v8, 9, v8
    v_add_u32 v6, v6, v8
    v_and_b32 v8, 1, v7
    v_lshlrev_b32 v8, 3, v8
    v_add_u32 v6, v6, v8
    s_lshr_b32 s{S_T0}, s{W}, 1
    s_lshl_b32 s{S_T0}, s{S_T0}, 12
    v_add_u32 v{V_OW}, s{S_T0}, v6
    v_cmp_gt_u32 vcc, 32, v{V_LN}
    v_mov_b32 v6, 1.0
    v_mov_b32 v8, 0
    v_cndmask_b32 v{V_WM}, v8, v6, vcc
    s_mov_b32 s{S_M32}, -1
    s_mov_b32 s{S_M32+1}, 0
    s_mov_b32 s{S_SC}, {fbits(128 ** -0.5):#x}
    s_mov_b32 s{S_L2E}, {fbits(1.4426950408889634):#x}
    s_mov_b32 s{S_HI}, 0xffff0000
    s_mov_b32 s{S_SEG}, s{S_TEAM}
    s_mov_b32 s{S_IT}, 0
    s_mov_b32 s{S_RDY1}, 0
    s_mov_b32 s{S_RCH}, 0
    """)
    load_qkv(A, S_SEG)
    lloop = L("T2_LOOP")
    A(f"{lloop}:")
    lc = L(); lcp = L()
    A(f"""
    s_cmp_lt_u32 s{S_SEG}, s{S_RCH}
    s_cbranch_scc1 {lc}
    s_lshl_b32 s{S_T0}, s{R}, 6
    s_add_u32 s{S_T0}, s{S_T0}, {FL_CH}
    v_mov_b32 v232, 0
    {lcp}:
    buffer_load_dword v233, v232, {WS_SRD}, s{S_T0} offen sc1
    s_waitcnt vmcnt(0)
    v_readfirstlane_b32 s{S_RCH}, v233
    s_cmp_lt_u32 s{S_SEG}, s{S_RCH}
    s_cbranch_scc0 {lcp}
    {lc}:
    s_lshl_b32 s{S_T0}, s{S_SEG}, 5
    s_add_u32 s{S_T0}, s{S_T0}, s{R}
    s_lshl_b32 s{S_T0}, s{S_T0}, 13
    s_add_u32 s{S_T0}, s{S_T0}, {WS_KVM}
    """)
    for kk in range(4): A(f"buffer_load_dwordx4 v[{48+4*kk}:{51+4*kk}], v{V_L16}, {WS_SRD}, s{S_T0} offen offset:{1024*kk} sc1")
    A(f"""
    s_lshr_b32 s{S_T1}, s{W}, 1
    s_lshl_b32 s{S_T1}, s{S_T1}, 11
    s_add_u32 s{S_T0}, s{S_T0}, s{S_T1}
    s_add_u32 s{S_T0}, s{S_T0}, 4096
    buffer_load_dwordx2 v[80:81], v{V_L16}, {WS_SRD}, s{S_T0} offen sc1
    buffer_load_dwordx2 v[82:83], v{V_L16}, {WS_SRD}, s{S_T0} offen offset:1024 sc1
    s_waitcnt vmcnt(0)
    """)
    for kk in range(4):
        q = v(4*kk, 4)
        for a, x in ((T1, 16+4*kk), (T2, 32+4*kk), (TM, 48+4*kk)):
            c = "0" if kk == 0 else v(a, 4)
            A(f"v_mfma_f32_16x16x32_bf16 v[{a}:{a+3}], {v(x,4)}, {q}, {c}")
    A("s_nop 7")
    S = list(range(84, 96))
    for i in range(84, 96, 2):
        A(f"v_cvt_pk_bf16_f32 v232, v{i}, v{i+1}\nv_lshlrev_b32 v{i}, 16, v232\nv_and_b32 v{i+1}, s{S_HI}, v232")
        A(f"v_mul_f32 v{i}, s{S_SC}, v{i}\nv_mul_f32 v{i+1}, s{S_SC}, v{i+1}")
        A(f"v_cvt_pk_bf16_f32 v232, v{i}, v{i+1}\nv_lshlrev_b32 v{i}, 16, v232\nv_and_b32 v{i+1}, s{S_HI}, v232")
    A("v_mov_b32 v233, 0xce6e6b28")
    for kt in range(2):
        for rr in range(4):
            p = S_MASK + 2*(4*kt + rr); x = (T1 if kt == 0 else T2) + rr
            A(f"v_cndmask_b32 v{x}, v233, v{x}, s[{p}:{p+1}]")
    A(f"v_max3_f32 v232, v{T1}, v{T1+1}, v{T1+2}")
    A(f"v_max3_f32 v232, v232, v{T1+3}, v{T2}")
    A(f"v_max3_f32 v233, v{T2+1}, v{T2+2}, v{T2+3}")
    A(f"v_max3_f32 v232, v232, v233, v{TM}")
    A(f"v_max3_f32 v232, v232, v{TM+1}, v{TM+2}")
    A(f"v_max_f32 v232, v232, v{TM+3}")
    xlane(A, "v_max_f32", 232, 233)
    for i in S: A(f"v_sub_f32 v{i}, v{i}, v232")
    for i in S: A(f"v_mul_f32 v{i}, s{S_L2E}, v{i}")
    for i in S: A(f"v_exp_f32 v{i}, v{i}")
    A("s_nop 0")
    A(f"v_pk_add_f32 v[234:235], v[{T1}:{T1+1}], v[{T1+2}:{T1+3}]")
    A(f"v_pk_add_f32 v[236:237], v[{T2}:{T2+1}], v[{T2+2}:{T2+3}]")
    A(f"v_pk_add_f32 v[238:239], v[{TM}:{TM+1}], v[{TM+2}:{TM+3}]")
    A("v_pk_add_f32 v[234:235], v[234:235], v[236:237]")
    A("v_add_f32 v238, v238, v239\nv_add_f32 v234, v234, v235")
    A(f"v_fma_f32 v234, v238, v{V_WM}, v234")
    xlane(A, "v_add_f32", 234, 235)
    A("v_rcp_f32 v235, v234\ns_nop 0")
    for i in S: A(f"v_mul_f32 v{i}, v{i}, v235")
    A(f"v_cvt_pk_bf16_f32 v236, v{TM}, v{TM+1}\nv_cvt_pk_bf16_f32 v237, v{TM+2}, v{TM+3}")
    A(f"v_cvt_pk_bf16_f32 v240, v{T1}, v{T1+1}\nv_cvt_pk_bf16_f32 v241, v{T1+2}, v{T1+3}\nv_cvt_pk_bf16_f32 v242, v{T2}, v{T2+1}\nv_cvt_pk_bf16_f32 v243, v{T2+2}, v{T2+3}")
    M = f"s[{S_M32}:{S_M32+1}]"
    A(f"v_cndmask_b32 v244, 0, v236, {M}\nv_cndmask_b32 v245, 0, v237, {M}")
    A(f"v_cndmask_b32 v246, v236, 0, {M}\nv_cndmask_b32 v247, v237, 0, {M}")
    A("s_nop 1")
    for t in range(4): A(f"v_mfma_f32_16x16x32_bf16 v[{96+4*t}:{99+4*t}], v[{64+4*t}:{67+4*t}], v[240:243], 0")
    for t in range(4):
        u, b = t >> 1, t & 1
        A(f"v_mfma_f32_16x16x16_bf16 v[{96+4*t}:{99+4*t}], v[{80+2*u}:{81+2*u}], v[{244+2*b}:{245+2*b}], v[{96+4*t}:{99+4*t}]")
    A("s_nop 7")
    for t in range(4):
        A(f"v_cvt_pk_bf16_f32 v{96+4*t}, v{96+4*t}, v{97+4*t}\nv_cvt_pk_bf16_f32 v{97+4*t}, v{98+4*t}, v{99+4*t}")
        A(f"ds_write_b64 v{V_OW}, v[{96+4*t}:{97+4*t}] offset:{LDS_O + 1024*t}")
    A("s_waitcnt lgkmcnt(0)\ns_barrier")
    lnx = L()
    A(f"s_add_u32 s{S_NX}, s{S_SEG}, 2\ns_cmp_ge_u32 s{S_NX}, 64\ns_cbranch_scc1 {lnx}")
    load_qkv(A, S_NX)
    A(f"{lnx}:")
    XB = [192, 196]
    def rd(ks): A(f"ds_read_b128 v[{XB[ks&1]}:{XB[ks&1]+3}], v{V_L16} offset:{LDS_O + 1024*ks}")
    rd(0)
    l4 = [L() for _ in range(8)]
    for ks in range(8):
        if ks + 1 < 8: rd(ks + 1)
        A(f"s_waitcnt lgkmcnt({1 if ks + 1 < 8 else 0})")
        for n in range(5):
            c = "0" if ks == 0 else v(112+16*n, 16)
            if n == 4: A(f"s_cmp_eq_u32 s{S_NTL}, 4\ns_cbranch_scc1 {l4[ks]}")
            A(f"v_mfma_f32_32x32x16_bf16 v[{112+16*n}:{127+16*n}], a[{n*32+ks*4}:{n*32+ks*4+3}], {v(XB[ks&1],4)}, {c}")
        A(f"{l4[ks]}:")
    A(f"""
    s_and_b32 s{S_T0}, s{S_IT}, 1
    s_lshl_b32 s{S_T1}, s{S_TEAM}, 1
    s_add_u32 s{S_T0}, s{S_T0}, s{S_T1}
    s_mul_i32 s{S_PB}, s{S_T0}, {PBUF}
    s_add_u32 s{S_PB}, s{S_PB}, {WS_P2}
    s_lshl_b32 s{S_T0}, s{S_NT0}, 6
    s_add_u32 s{S_T0}, s{S_T0}, s{S_PB}
    s_nop 7
    """)
    ls = L()
    for n in range(5):
        if n == 4: A(f"s_cmp_eq_u32 s{S_NTL}, 4\ns_cbranch_scc1 {ls}")
        redux.store_tile(A, 112+16*n, V_PA, None, S_T0, 200, ST)
        A(f"s_add_u32 s{S_T0}, s{S_T0}, 64")
    A(f"{ls}:")
    A(f"s_add_u32 s{S_IT}, s{S_IT}, 1")
    redux.team_signal(A, S_FOWN, S_IT, ST, 232, 233)
    redux.team_wait(A, S_FLINE, S_IT, V_LN, 232, 233)
    redux.reduce_rows(A, S_PB, V_LN, V_RL, V_SEL, V_LW, V_LR, 112, 152, LDS_ROW, S_U0, S_U1)
    lfin = L()
    A(f"s_cmp_eq_u32 s{W}, 0\ns_cbranch_scc0 {lfin}")
    finish(A)
    A(f"{lfin}:")
    A(f"s_add_u32 s{S_SEG}, s{S_SEG}, 2\ns_cmp_lt_u32 s{S_SEG}, 64\ns_cbranch_scc1 {lloop}")
    A("s_waitcnt vmcnt(0)\ns_endpgm")

def finish(A):
    R = S_RANK
    X, T = 172, 188
    A(f"""
    s_lshl_b32 s{S_T0}, s{S_SEG}, 5
    s_add_u32 s{S_T0}, s{S_T0}, s{R}
    s_mul_i32 s{S_T0}, s{S_T0}, 1152
    buffer_load_dwordx4 v[112:115], v{V_L16}, s[{SRD_X}:{SRD_X+3}], s{S_T0} offen
    v_mov_b32 v116, 0
    v_mov_b32 v117, 0
    v_mov_b32 v118, 0
    v_mov_b32 v119, 0
    s_mov_b64 exec, 0xff
    buffer_load_dwordx4 v[116:119], v{V_L16}, s[{SRD_X}:{SRD_X+3}], s{S_T0} offen offset:1024
    s_mov_b64 exec, -1
    """)
    redux.sum_rows(A, V_LR, LDS_ROW, X, T)
    A("s_waitcnt vmcnt(0)")
    for d in range(8):
        a, b = X + 2*d, X + 2*d + 1
        A(f"v_cvt_pk_bf16_f32 v204, v{a}, v{b}\nv_lshlrev_b32 v{a}, 16, v204\nv_and_b32 v{b}, s{S_HI}, v204")
        A(f"v_lshlrev_b32 v205, 16, v{112+d}\nv_and_b32 v206, s{S_HI}, v{112+d}")
        A(f"v_add_f32 v{a}, v{a}, v205\nv_add_f32 v{b}, v{b}, v206")
        A(f"v_cvt_pk_bf16_f32 v{120+d}, v{a}, v{b}\nv_lshlrev_b32 v{a}, 16, v{120+d}\nv_and_b32 v{b}, s{S_HI}, v{120+d}")
    A(f"""
    s_add_u32 s{S_T1}, s{S_T0}, {WS_H}
    buffer_store_dwordx4 v[120:123], v{V_L16}, {WS_SRD}, s{S_T1} offen sc1
    s_mov_b64 exec, 0xff
    buffer_store_dwordx4 v[124:127], v{V_L16}, {WS_SRD}, s{S_T1} offen offset:1024 sc1
    s_mov_b64 exec, -1
    """)
    A(f"v_pk_add_f32 v[204:205], v[{X}:{X+1}], v[{X+2}:{X+3}]")
    for d in range(2, 8): A(f"v_pk_add_f32 v[204:205], v[204:205], v[{X+2*d}:{X+2*d+1}]")
    A("v_add_f32 v204, v204, v205")
    redux.wave_sum(A, 204, 205)
    A(f"v_mul_f32 v204, {fbits(1.0/576):#x}, v204")
    A("v_mov_b32 v205, 0\nv_mov_b32 v206, 0")
    for i in range(8): A(f"v_sub_f32 v207, v{X+i}, v204\nv_fmac_f32 v205, v207, v207")
    for i in range(8, 16): A(f"v_sub_f32 v207, v{X+i}, v204\nv_fmac_f32 v206, v207, v207")
    A(f"v_cmp_gt_u32 vcc, 8, v{V_LN}\ns_nop 1\nv_cndmask_b32 v206, 0, v206, vcc\nv_add_f32 v205, v205, v206")
    redux.wave_sum(A, 205, 206)
    A(f"v_mul_f32 v205, {fbits(1.0/576):#x}, v205")
    round_bf(A, 204, 206); round_bf(A, 205, 206)
    A(f"v_add_f32 v205, {fbits(1e-5):#x}, v205")
    round_bf(A, 205, 206)
    A("v_sqrt_f32 v205, v205\ns_nop 0")
    round_bf(A, 205, 206)
    A("v_rcp_f32 v205, v205\ns_nop 0")
    for d in range(8):
        a, b = X + 2*d, X + 2*d + 1
        A(f"v_sub_f32 v{a}, v{a}, v204\nv_sub_f32 v{b}, v{b}, v204")
        A(f"v_cvt_pk_bf16_f32 v206, v{a}, v{b}\nv_lshlrev_b32 v{a}, 16, v206\nv_and_b32 v{b}, s{S_HI}, v206")
        A(f"v_mul_f32 v{a}, v{a}, v205\nv_mul_f32 v{b}, v{b}, v205")
        A(f"v_cvt_pk_bf16_f32 v{128+d}, v{a}, v{b}")
    A(f"""
    v_lshrrev_b32 v204, 2, v{V_LN}
    v_lshlrev_b32 v204, 11, v204
    v_and_b32 v205, 3, v{V_LN}
    v_lshlrev_b32 v205, 8, v205
    v_add_u32 v204, v204, v205
    s_mul_i32 s{S_T1}, s{S_SEG}, 36864
    s_lshr_b32 s{S_T2}, s{R}, 4
    s_lshl_b32 s{S_T2}, s{S_T2}, 10
    s_add_u32 s{S_T1}, s{S_T1}, s{S_T2}
    s_and_b32 s{S_T2}, s{R}, 15
    s_lshl_b32 s{S_T2}, s{S_T2}, 4
    s_add_u32 s{S_T1}, s{S_T1}, s{S_T2}
    s_add_u32 s{S_T1}, s{S_T1}, {WS_HN}
    buffer_store_dwordx4 v[128:131], v204, {WS_SRD}, s{S_T1} offen sc1
    s_add_u32 s{S_T1}, s{S_T1}, 32768
    s_mov_b64 exec, 0xff
    buffer_store_dwordx4 v[132:135], v204, {WS_SRD}, s{S_T1} offen sc1
    s_mov_b64 exec, -1
    s_waitcnt vmcnt(0)
    s_lshl_b32 s{S_T0}, s{S_SEG}, 7
    s_lshl_b32 s{S_T1}, s{R}, 2
    s_add_u32 s{S_T0}, s{S_T0}, s{S_T1}
    s_add_u32 s{S_T0}, s{S_T0}, {FL_HN}
    s_mov_b32 s{S_T1}, 1
    """)
    store_flag(A, S_T0, S_T1, v0=204, v1=205)
```

```python
import sys
from common import *
import chain

KNAME = "sequential_preLN__memory_aug_recurrent_mem_tr__glu_gated_swiglu__prompt_kernel"

def entry(A):
    A(f"""
    s_cmp_ge_u32 s2, 256
    s_cbranch_scc1 L_EXIT
    s_load_dwordx16 s[16:31], s[0:1], 0
    s_load_dwordx8 s[32:39], s[0:1], 64
    s_load_dwordx4 s[40:43], s[0:1], 96
    s_getreg_b32 s{S_XCC}, hwreg(HW_REG_XCC_ID, 0, 4)
    v_lshrrev_b32 v1, 6, v0
    s_nop 0
    v_readfirstlane_b32 s{S_WAVE}, v1
    s_waitcnt lgkmcnt(0)
    s_mov_b32 s{SRD_WS}, s{S_WS}
    s_mov_b32 s{SRD_WS+1}, s{S_WS+1}
    s_mov_b32 s{SRD_WS+2}, {WS_SIZE:#x}
    s_mov_b32 s{SRD_WS+3}, 0x20000
    s_mov_b32 s{SRD_DBG}, s{S_DBG}
    s_mov_b32 s{SRD_DBG+1}, s{S_DBG+1}
    s_mov_b32 s{SRD_DBG+2}, 256
    s_mov_b32 s{SRD_DBG+3}, 0x20000
    s_cmp_eq_u32 s{S_WAVE}, 0
    s_cbranch_scc0 L_TK
    s_and_b32 s60, s{S_XCC}, 7
    s_lshl_b32 s60, s60, 2
    v_mov_b32 v2, s60
    v_mov_b32 v3, 1
    s_mov_b64 exec, 1
    buffer_atomic_add v3, v2, s[{SRD_DBG}:{SRD_DBG+3}], 0 offen offset:{DBG_T1} sc0
    s_waitcnt vmcnt(0)
    v_mov_b32 v2, 0
    ds_write_b32 v2, v3
    s_waitcnt lgkmcnt(0)
    s_mov_b64 exec, -1
    L_TK:
    s_barrier
    v_mov_b32 v2, 0
    ds_read_b32 v3, v2
    s_waitcnt lgkmcnt(0)
    v_readfirstlane_b32 s{S_RANK}, v3
    s_barrier
    """)

def build(prof=False, roles="ctuf"):
    import t1, t2, ffn
    A = Asm()
    global hdr
    hdr = f"; @launch grid=(256,1,1) block=(256,1,1) lds=163840\n"
    A.L.append('.amdgcn_target "amdgcn-amd-amdhsa--gfx950"')
    A.L.append(".text")
    A.L.append(f".globl {KNAME}\n.p2align 8\n.type {KNAME},@function\n{KNAME}:")
    entry(A)
    A(f"""
    s_cmp_eq_u32 s{S_XCC}, 0
    s_cbranch_scc1 L_CHAIN
    s_cmp_lt_u32 s{S_XCC}, 3
    s_cbranch_scc1 L_T1
    s_cmp_lt_u32 s{S_XCC}, 5
    s_cbranch_scc1 L_T2
    """)
    if 'f' in roles:
        A(f"s_sub_u32 s47, s{S_XCC}, 5")
        ffn.ffn_role(A)
    else:
        chain.arrive(A); A("s_endpgm")
    A("L_T1:")
    if 't' in roles:
        A(f"s_sub_u32 s47, s{S_XCC}, 1")
        t1.t1_role(A)
    else:
        chain.arrive(A); A("s_endpgm")
    A("L_T2:")
    if 'u' in roles:
        A(f"s_sub_u32 s47, s{S_XCC}, 3")
        t2.t2_role(A)
    else:
        chain.arrive(A); A("s_endpgm")
    A("L_CHAIN:")
    if 'c' in roles:
        chain.chain_role(A, safe=False, prof=prof)
    else:
        chain.arrive(A); A("s_endpgm")
    A("L_EXIT:\ns_endpgm")
    desc = f"""
.section .rodata,"a"
.p2align 6
.amdhsa_kernel {KNAME}
  .amdhsa_next_free_vgpr 512
  .amdhsa_next_free_sgpr 102
  .amdhsa_accum_offset 256
  .amdhsa_group_segment_fixed_size 0
  .amdhsa_kernarg_size 112
  .amdhsa_user_sgpr_count 2
  .amdhsa_user_sgpr_kernarg_segment_ptr 1
  .amdhsa_system_sgpr_workgroup_id_x 1
.end_amdhsa_kernel
"""
    head = open("header.txt").read()
    head = "".join(l for l in head.splitlines(True) if "@launch" not in l)
    return head + hdr + A.text() + desc

if __name__ == "__main__":
    out = sys.argv[1] if len(sys.argv) > 1 else "out.s"
    prof = "prof" in sys.argv
    for a in sys.argv:
        if a.startswith("opt:"):
            k_, v_ = a[4:].split("="); chain.OPT[k_] = int(v_)
        if a.startswith("ld="): chain.LDF[0] = " " + a[3:].replace("+", " ") if a[3:] else ""
        if a.startswith("st="): chain.STF[0] = " " + a[3:].replace("+", " ") if a[3:] else ""
    roles = "ctuf"
    for a in sys.argv:
        if a.startswith("roles="): roles = a[6:]
    open(out, "w").write(build(prof=prof, roles=roles))
```
